```python
import torch

def _softmax(x, axis=-1):
    return torch.softmax(x, dim=axis)
def _gelu(x):
    return torch.nn.functional.gelu(x, approximate="tanh")
def _silu(x):
    return torch.nn.functional.silu(x)
def _sigmoid(x):
    return torch.sigmoid(x)
def _layernorm(x, axis=-1, eps=1e-5):
    m = x.mean(dim=axis, keepdim=True)
    v = x.var(dim=axis, keepdim=True, unbiased=False)
    return (x - m) / torch.sqrt(v + eps)
def _scatter_add(tgt, idx, src, axis=0):
    return tgt.clone().index_add_(axis, idx, src)
def _segment_sum(src, seg, n):
    out = torch.zeros((n,) + src.shape[1:], dtype=src.dtype)
    return out.index_add_(0, seg, src)
def _pad(x, pw):
    flat = tuple(v for pair in reversed(pw) for v in pair)
    return torch.nn.functional.pad(x, flat)

kernel_name = 'sequential_preLN__softmax_full_mha__glu_gated_bilinear__prompt'

def setup_inputs():

    _w = (lambda a: (lambda t: t.to(torch.bfloat16) if t.is_floating_point() else t)(torch.as_tensor(a)))
    def _A_setup():
        B, S, D = 1, 2048, 1024
        return {
            "x": _w((lambda *s: torch.randn(*s, dtype=torch.bfloat16) * 0.05)(B, S, D)),
            "wqkv": _w((lambda *s: torch.randn(*s, dtype=torch.bfloat16) * 0.05)(D, 3 * D)),
            "wo": _w((lambda *s: torch.randn(*s, dtype=torch.bfloat16) * 0.05)(D, D)),
        }
    _A_in = _A_setup()

    def _B_setup():
        B, S, D, F = 1, 2048, 1024, 3584
        return {
            "x": _w((lambda *s: torch.randn(*s, dtype=torch.bfloat16) * 0.05)(B, S, D)),
            "w_gate": _w((lambda *s: torch.randn(*s, dtype=torch.bfloat16) * 0.8)(D, F) * (D ** -0.5)),
            "w_up": _w((lambda *s: torch.randn(*s, dtype=torch.bfloat16) * 0.8)(D, F) * (D ** -0.5)),
            "w_down": _w((lambda *s: torch.randn(*s, dtype=torch.bfloat16) * 0.8)(F, D) * (F ** -0.5)),
        }
    _B_in = _B_setup()

    return {
        "A_x": _A_in["x"],
        "A_wqkv": _A_in["wqkv"],
        "A_wo": _A_in["wo"],
        "B_x": _B_in["x"],
        "B_w_gate": _B_in["w_gate"],
        "B_w_up": _B_in["w_up"],
        "B_w_down": _B_in["w_down"],
    }

def reference(A_x, A_wqkv, A_wo, B_x, B_w_gate, B_w_up, B_w_down):
    def _A_ref(x, wqkv, wo):
        B, S, D = x.shape
        H = 32; Dh = D // H
        qkv = (lambda x, *d: x.permute(*d))((x @ wqkv).reshape(B, S, 3, H, Dh), 2, 0, 3, 1, 4)
        q, k, v = qkv[0], qkv[1], qkv[2]
        scale = Dh ** -0.5
        scores = torch.einsum("bhqd,bhkd->bhqk", q, k) * scale
        p = _softmax(scores, axis=-1)
        o = torch.einsum("bhqk,bhkd->bhqd", p, v)
        return (lambda x, *d: x.permute(*d))(o, 0, 2, 1, 3).reshape(B, S, D) @ wo

    def _B_ref(x, w_gate, w_up, w_down):
        g = torch.einsum("bsd,df->bsf", x, w_gate)
        u = torch.einsum("bsd,df->bsf", x, w_up)
        h = g * u
        return torch.einsum("bsf,fd->bsd", h, w_down)

    x = A_x
    h = x + _A_ref(_layernorm(x, axis=-1), A_wqkv, A_wo)
    h2 = h + _B_ref(_layernorm(h, axis=-1), B_w_gate, B_w_up, B_w_down)
    return h2
```

```python
import sys, math, struct

NAME = "sequential_preLN__softmax_full_mha__glu_gated_bilinear__prompt"

XN   = 0x0000000
QF   = 0x0400000
KV   = 0x0800000
OF   = 0x1000000
HC   = 0x1400000
ACT  = 0x1800000
MUX  = 0x2600000
MU2  = 0x2602000
WB   = 0x2604000
SSQ  = 0x2610000
WS_BYTES = 0x2640000

def f2u(x):
    return struct.unpack("<I", struct.pack("<f", x))[0]

class E:
    def __init__(self):
        self.l = []
    def __call__(self, s):
        for line in s.strip("\n").split("\n"):
            line = line.strip()
            if not line:
                continue
            if line.endswith(":") or line.startswith("."):
                self.l.append(line)
            else:
                self.l.append("    " + line)
    def ext(self, lines):
        for x in lines:
            self(x)
    def text(self):
        return "\n".join(self.l) + "\n"

def vr(b, n=1, f="v"):
    return f"{f}{b}" if n == 1 else f"{f}[{b}:{b+n-1}]"
def ar(b, n=1):
    return vr(b, n, "a")

def kernel_head(e, name, nwg):
    e(f".text\n.globl {name}\n.p2align 8\n.type {name},@function\n{name}:")
    e(f"s_cmp_ge_u32 s2, {nwg}\ns_cbranch_scc1 {name}_end")

def kernel_tail(e, name):
    e(f"{name}_end:\ns_endpgm")

def descriptor(name, nv, na, ns=96):
    acc = max(4, (nv + 3) // 4 * 4)
    tot = acc + na if na else nv
    return f""".section .rodata,"a"
.p2align 6
.amdhsa_kernel {name}
  .amdhsa_next_free_vgpr {tot}
  .amdhsa_next_free_sgpr {ns}
  .amdhsa_accum_offset {acc}
  .amdhsa_group_segment_fixed_size 0
  .amdhsa_kernarg_size 80
  .amdhsa_user_sgpr_count 2
  .amdhsa_user_sgpr_kernarg_segment_ptr 1
  .amdhsa_system_sgpr_workgroup_id_x 1
  .amdhsa_float_denorm_mode_32 3
  .amdhsa_ieee_mode 0
.end_amdhsa_kernel
"""

def srd(e, d, lo, hi, nbytes):
    e(f"s_mov_b32 s{d}, s{lo}\ns_mov_b32 s{d+1}, s{hi}\ns_mov_b32 s{d+2}, {hex(nbytes)}\ns_mov_b32 s{d+3}, 0x00020000")

def spread(mf, fill, frac=1.0, start=0):
    n = len(mf)
    last = max(start + 1, int(n * frac))
    out = []
    j = 0
    k = len(fill)
    for i, m in enumerate(mf):
        out.append(m)
        if i >= start:
            tgt = k if i >= last - 1 else ((i - start + 1) * k + (last - start) - 1) // (last - start)
            while j < min(tgt, k):
                out.append(fill[j]); j += 1
    while j < k:
        out.append(fill[j]); j += 1
    return out

def merge(a, b):
    out = []; ia = ib = 0
    while ia < len(a) or ib < len(b):
        if ib >= len(b) or (ia < len(a) and ia * len(b) <= ib * len(a)):
            out.append(a[ia]); ia += 1
        else:
            out.append(b[ib]); ib += 1
    return out

class Gemm:
    def __init__(self, name, MT, NT, KS, NS, XD, ndma, acc0, NX=0, frac=0.8):
        self.name, self.MT, self.NT, self.KS, self.NS, self.XD = name, MT, NT, KS, NS, XD
        self.ndma, self.acc0, self.NX, self.frac = ndma, acc0, NX, frac
        self.NW = NT + NX
        self.na = 2 * self.NW * 4 + XD * MT * 4
        self.vq = []
        self.extra_tail = {}
        self.sloop = 20
    def acc(self, nt, mt): return self.acc0 + (nt * self.MT + mt) * 4
    def wreg(self, par, nt): return (par * self.NW + nt) * 4
    def xreg(self, slot, mt): return 2 * self.NW * 4 + (slot * self.MT + mt) * 4
    def wread(self, nt, dst, slot, kk): raise NotImplementedError
    def dma(self, i, slot): raise NotImplementedError
    def wadv(self): raise NotImplementedError
    def xload(self, dst, mt): raise NotImplementedError
    def xadv(self): raise NotImplementedError
    def swapped(self, nt): return False
    def need(self, tags):
        idx = max(i for i, t in enumerate(self.vq) if t in tags)
        return min(63, len(self.vq) - 1 - idx)
    def x_items(self, j):
        out = []
        for mt in range(self.MT):
            out.append((self.xload(self.xreg(j % self.XD, mt), mt), ("x", j)))
        out.append((self.xadv(), None))
        return out
    def dma_items(self, st, lo, hi):
        out = []
        for i in range(lo, hi):
            m0, ld = self.dma(i, st % self.NS)
            out.append((m0, None))
            out.append((ld, ("w", st)))
        if hi == self.ndma:
            out.append((self.wadv(), None))
        return out
    def reads(self, j):
        out = []
        for nt in range(self.NW):
            out += self.wread(nt, self.wreg(j & 1, nt), (j // 2) % self.NS, j & 1)
        return out
    def issue(self, items):
        lines = []
        for line, tag in items:
            lines.append(line)
            if tag is not None:
                self.vq.append(tag)
        return lines
    def prologue_loads(self, e, first=(), after0=()):
        half = (self.ndma + 1) // 2
        def plain(items):
            for line, tag in items:
                e(line)
                if "m0" in line.split(",")[0]:
                    e("s_nop 0")
                if tag is not None:
                    self.vq.append(tag)
        plain(first)
        nx = 0
        for st in range(self.NS):
            plain(self.dma_items(st, 0, self.ndma if st < self.NS - 1 else half))
            for j in (2 * st, 2 * st + 1):
                if j < self.XD - 1:
                    plain(self.x_items(j)); nx = j + 1
            if st == 0:
                plain(after0)
        for j in range(nx, self.XD - 1):
            plain(self.x_items(j))
    def zero_acc(self, e):
        for r in range(self.NW * self.MT * 4):
            e(f"v_mov_b32 v{self.acc0 + r}, 0")
    def first_reads(self, e, tags=()):
        e(f"s_waitcnt vmcnt({self.need({('w', 0)} | set(tags))})\ns_barrier")
        e.ext(self.reads(0))
    def step(self, j):
        MT, NW, KS, NS, XD = self.MT, self.NW, self.KS, self.NS, self.XD
        half = (self.ndma + 1) // 2
        tags = {("x", j)}
        bar = (j & 1) and j + 1 < KS
        if bar:
            tags.add(("w", (j + 1) // 2))
        n = self.need(tags)
        head = [("wait", n)]
        if bar:
            head.append("s_barrier")
        mf = []
        for nt in range(NW):
            order = range(MT) if nt % 2 == 0 else range(MT - 1, -1, -1)
            for mt in order:
                w, x = ar(self.wreg(j & 1, nt), 4), ar(self.xreg(j % XD, mt), 4)
                a, b = (x, w) if self.swapped(nt) else (w, x)
                d = vr(self.acc(nt, mt), 4)
                mf.append(f"v_mfma_f32_16x16x32_bf16 {d}, {a}, {b}, {d}")
        rd = self.reads(j + 1) if j + 1 < KS else []
        vm = []
        if j & 1:
            st = (j - 1) // 2 + NS
            if st < KS // 2:
                vm += self.dma_items(st, 0, half)
        else:
            st = (j - 2) // 2 + NS
            if st < KS // 2:
                vm += self.dma_items(st, half, self.ndma)
        if j + XD - 1 < KS:
            vm += self.x_items(j + XD - 1)
        vm += self.extra_tail.get(j, [])
        vml = self.issue(vm)
        return head, mf, rd, vml
    def render(self, head, mf, rd, vml, n):
        out = []
        for h in head:
            out.append(f"s_waitcnt vmcnt({n}) lgkmcnt(0)" if isinstance(h, tuple) else h)
        body = self.schedule(mf, rd, vml)
        fixed = []
        for i, line in enumerate(body):
            if line.endswith(" lds") and fixed and "m0" in fixed[-1].split(",")[0]:
                fixed.append("s_nop 0")
            fixed.append(line)
        return out + fixed
    def schedule(self, mf, rd, vml):
        return spread(mf, merge(rd, vml), self.frac)
    def mainloop(self, e):
        KS = self.KS
        P = 2 * self.NS * self.XD // math.gcd(2 * self.NS, self.XD)
        steps = [self.step(j) for j in range(KS)]
        def same(a, b):
            return [h for h in a[0] if not isinstance(h, tuple)] == [h for h in b[0] if not isinstance(h, tuple)] and a[1:] == b[1:]
        nl = 1
        while (nl + 1) * P <= KS and all(same(steps[nl * P + i], steps[i]) for i in range(P)):
            nl += 1
        if nl > 1:
            e(f"s_mov_b32 s{self.sloop}, {nl}\n.p2align 6\n{self.name}_loop:")
            for i in range(P):
                n = min(steps[it * P + i][0][0][1] for it in range(nl))
                lines = self.render(*steps[i], n)
                if i == P - 1:
                    lines.insert(len(lines) - 2, f"s_sub_u32 s{self.sloop}, s{self.sloop}, 1")
                    lines.append(f"s_cmp_lg_u32 s{self.sloop}, 0")
                    lines.append(f"s_cbranch_scc1 {self.name}_loop")
                e.ext(lines)
            j0 = nl * P
        else:
            j0 = 0
        for j in range(j0, KS):
            e.ext(self.render(*steps[j], steps[j][0][0][1]))
        self.loop_info = (P, nl, j0)

def wave_lane(e, vlane, swave, tmp):
    e(f"v_lshrrev_b32 v{tmp}, 6, v0\nv_and_b32 v{vlane}, 63, v0\ns_nop 0\nv_readfirstlane_b32 s{swave}, v{tmp}")

def k_prep():
    e = E(); name = "prep_kernel"
    kernel_head(e, name, 256)
    e("s_load_dwordx2 s[4:5], s[0:1], 72\ns_load_dwordx2 s[6:7], s[0:1], 0\ns_load_dwordx2 s[22:23], s[0:1], 16")
    wave_lane(e, 1, 21, 2)
    e("s_waitcnt lgkmcnt(0)")
    srd(e, 8, 4, 5, WS_BYTES); srd(e, 12, 6, 7, 0x400000); srd(e, 16, 22, 23, 0x200000)
    e("""
    s_lshl_b32 s24, s2, 3
    s_lshl_b32 s25, s21, 1
    s_add_u32 s24, s24, s25
    v_and_b32 v2, 1, v1
    v_add_u32 v2, s24, v2
    v_lshrrev_b32 v3, 1, v1
    v_lshlrev_b32 v4, 11, v2
    v_lshl_add_u32 v4, v3, 4, v4
    """)
    for i in range(4):
        e(f"buffer_load_dwordx4 v[{16+4*i}:{19+4*i}], v4, s[12:15], 0 offen offset:{512*i}")
    e("""
    s_lshl_b32 s26, s2, 2
    s_add_u32 s26, s26, s21
    s_lshl_b32 s27, s26, 11
    v_lshlrev_b32 v5, 4, v1
    buffer_load_dwordx4 v[8:11], v5, s[16:19], s27 offen
    buffer_load_dwordx4 v[12:15], v5, s[16:19], s27 offen offset:1024
    s_waitcnt vmcnt(2)
    """)
    for r in range(16):
        e(f"v_lshlrev_b32 v{32+2*r}, 16, v{16+r}\nv_and_b32 v{33+2*r}, 0xffff0000, v{16+r}")
    e("v_add_f32 v6, v32, v33")
    for r in range(2, 32):
        e(f"v_add_f32 v6, v6, v{32+r}")
    def red_same_parity(v, t):
        e(f"""
        s_nop 1
        v_add_f32_dpp v{v}, v{v}, v{v} quad_perm:[2,3,0,1] row_mask:0xf bank_mask:0xf
        s_nop 1
        v_add_f32_dpp v{v}, v{v}, v{v} row_ror:4 row_mask:0xf bank_mask:0xf
        s_nop 1
        v_add_f32_dpp v{v}, v{v}, v{v} row_ror:8 row_mask:0xf bank_mask:0xf
        v_mov_b32 v{t}, v{v}
        s_nop 1
        v_permlane16_swap_b32 v{v}, v{t}
        v_add_f32 v{v}, v{v}, v{t}
        v_mov_b32 v{t}, v{v}
        s_nop 1
        v_permlane32_swap_b32 v{v}, v{t}
        v_add_f32 v{v}, v{v}, v{t}
        """)
    red_same_parity(6, 7)
    e(f"v_mul_f32 v6, {hex(f2u(1/1024))}, v6")
    for r in range(32):
        e(f"v_sub_f32 v{32+r}, v{32+r}, v6")
    e("v_mul_f32 v64, v32, v32")
    for r in range(1, 32):
        e(f"v_fmac_f32 v64, v{32+r}, v{32+r}")
    red_same_parity(64, 7)
    e(f"""
    v_mov_b32 v7, {hex(f2u(1e-5))}
    v_fmac_f32 v7, {hex(f2u(1/1024))}, v64
    v_rsq_f32 v7, v7
    s_nop 0
    """)
    for r in range(32):
        e(f"v_mul_f32 v{32+r}, v{32+r}, v7")
    for r in range(16):
        e(f"v_cvt_pk_bf16_f32 v{16+r}, v{32+2*r}, v{33+2*r}")
    e(f"""
    v_lshrrev_b32 v65, 6, v2
    v_lshlrev_b32 v65, 17, v65
    v_bfe_u32 v66, v2, 4, 2
    v_lshl_add_u32 v65, v66, 10, v65
    v_and_b32 v66, 15, v2
    v_lshl_add_u32 v65, v66, 4, v65
    v_lshrrev_b32 v66, 2, v3
    v_lshl_add_u32 v65, v66, 12, v65
    v_and_b32 v66, 3, v3
    v_lshl_add_u32 v65, v66, 8, v65
    """)
    for i in range(4):
        e(f"s_mov_b32 s28, {XN + i*32768}\nbuffer_store_dwordx4 v[{16+4*i}:{19+4*i}], v65, s[8:11], s28 offen")
    e(f"""
    v_lshlrev_b32 v66, 2, v2
    s_mov_b32 s28, {MUX}
    v_cmp_gt_u32 vcc, 2, v1
    s_and_saveexec_b64 s[30:31], vcc
    buffer_store_dword v6, v66, s[8:11], s28 offen
    s_mov_b64 exec, s[30:31]
    s_waitcnt vmcnt(5)
    """)
    e("v_mov_b32 v6, 0")
    for r in range(8):
        e(f"v_lshlrev_b32 v32, 16, v{8+r}\nv_and_b32 v33, 0xffff0000, v{8+r}\nv_add_f32 v6, v6, v32\nv_add_f32 v6, v6, v33")
    e("s_nop 1\nv_add_f32_dpp v6, v6, v6 quad_perm:[1,0,3,2] row_mask:0xf bank_mask:0xf")
    red_same_parity(6, 7)
    e(f"""
    v_mul_f32 v6, {hex(f2u(1/1024))}, v6
    v_cvt_pk_bf16_f32 v7, v6, v6
    v_and_b32 v32, 0xffff0000, v7
    v_sub_f32 v32, v6, v32
    v_cvt_pk_bf16_f32 v32, v32, v32
    s_lshr_b32 s28, s26, 5
    s_lshl_b32 s28, s28, 7
    s_bfe_u32 s29, s26, 0x10004
    s_lshl_b32 s29, s29, 5
    s_add_u32 s28, s28, s29
    s_bfe_u32 s29, s26, 0x10002
    s_lshl_b32 s29, s29, 4
    s_add_u32 s28, s28, s29
    s_bfe_u32 s29, s26, 0x10003
    s_lshl_b32 s29, s29, 3
    s_add_u32 s28, s28, s29
    s_and_b32 s29, s26, 3
    s_lshl_b32 s29, s29, 1
    s_add_u32 s28, s28, s29
    s_add_u32 s28, s28, {WB}
    v_mov_b32 v33, 0
    v_cmp_gt_u32 vcc, 1, v1
    s_and_saveexec_b64 s[30:31], vcc
    buffer_store_short v7, v33, s[8:11], s28 offen
    buffer_store_short v32, v33, s[8:11], s28 offen offset:64
    s_mov_b64 exec, s[30:31]
    """)
    kernel_tail(e, name)
    return name, e.text(), descriptor(name, 68, 0), (256, 256, 0)

def k_qkv(NS=4, XD=8):
    e = E(); name = "qkv_kernel"
    g = Gemm("qkv", MT=4, NT=6, KS=32, NS=NS, XD=XD, ndma=3, acc0=0)
    VL, VX, VD, VRE, VRO, VT = 100, 101, 102, 105, 106, 108
    SX, SW, SM = 24, 25, 26
    STG = 12288
    kernel_head(e, name, 256)
    e("s_load_dwordx2 s[4:5], s[0:1], 72\ns_load_dwordx2 s[6:7], s[0:1], 8")
    wave_lane(e, VL, 21, VT)
    e("""
    s_and_b32 s22, s2, 1
    s_lshl_b32 s22, s22, 2
    s_bfe_u32 s23, s2, 0x20003
    s_add_u32 s22, s22, s23
    s_bfe_u32 s23, s2, 0x20001
    s_lshl_b32 s23, s23, 3
    s_lshr_b32 s27, s2, 5
    s_add_u32 s23, s23, s27
    """)
    e(f"""
    s_lshl_b32 s27, s22, 2
    s_add_u32 s27, s27, s21
    s_lshl_b32 s{SX}, s27, 17
    s_add_u32 s{SX}, s{SX}, {XN}
    v_lshlrev_b32 v{VX}, 4, v{VL}
    s_mul_i32 s{SM}, s21, 3072
    s_mul_i32 s28, s21, 192
    s_lshl_b32 s{SW}, s23, 6
    """)
    for i in range(3):
        t = VT
        e(f"""
        v_add_u32 v{t}, s28, v{VL}
        v_add_u32 v{t}, {64*i}, v{t}
        v_mul_u32_u24 v{t+1}, 5462, v{t}
        v_lshrrev_b32 v{t+1}, 16, v{t+1}
        v_mul_u32_u24 v{t+2}, 12, v{t+1}
        v_sub_u32 v{t+2}, v{t}, v{t+2}
        v_bfe_u32 v{t+3}, v{t+1}, 2, 1
        v_bfe_u32 v{t+4}, v{t+1}, 3, 1
        v_and_b32 v{t+5}, 0x33, v{t+1}
        v_lshl_add_u32 v{t+5}, v{t+3}, 3, v{t+5}
        v_lshl_add_u32 v{t+5}, v{t+4}, 2, v{t+5}
        v_mul_u32_u24 v{VD+i}, 6144, v{t+5}
        v_lshlrev_b32 v{t+3}, 1, v{t+3}
        v_xor_b32 v{t+2}, v{t+2}, v{t+3}
        v_lshrrev_b32 v{t+4}, 2, v{t+2}
        v_lshl_add_u32 v{VD+i}, v{t+4}, 11, v{VD+i}
        v_and_b32 v{t+4}, 3, v{t+2}
        v_lshl_add_u32 v{VD+i}, v{t+4}, 4, v{VD+i}
        """)
    t = VT
    e(f"""
    v_bfe_u32 v{t}, v{VL}, 2, 3
    v_lshrrev_b32 v{t+1}, 5, v{VL}
    v_lshl_add_u32 v{t}, v{t+1}, 4, v{t}
    v_mul_u32_u24 v{t}, 192, v{t}
    v_and_b32 v{t+1}, 3, v{VL}
    v_lshl_add_u32 v{t}, v{t+1}, 3, v{t}
    v_bfe_u32 v{t+1}, v{VL}, 4, 1
    v_lshlrev_b32 v{t+1}, 5, v{t+1}
    v_add_u32 v{VRE}, v{t}, v{t+1}
    v_sub_u32 v{VRO}, v{t}, v{t+1}
    v_add_u32 v{VRO}, 32, v{VRO}
    s_waitcnt lgkmcnt(0)
    """)
    srd(e, 8, 4, 5, WS_BYTES); srd(e, 12, 6, 7, 0x600000)
    def wread(nt, dst, slot, kk):
        v = VRE if nt % 2 == 0 else VRO
        off = slot * STG + kk * 6144 + (nt & ~1) * 32
        return [f"ds_read_b64_tr_b16 {ar(dst,2)}, v{v} offset:{off}",
                f"ds_read_b64_tr_b16 {ar(dst+2,2)}, v{v} offset:{off + 8*192}"]
    g.wread = wread
    g.dma = lambda i, slot: (f"s_add_u32 m0, s{SM}, {slot*STG + i*1024}", f"buffer_load_dwordx4 v{VD+i}, s[12:15], s{SW} offen lds")
    g.wadv = lambda: f"s_add_u32 s{SW}, s{SW}, {64*6144}"
    g.xload = lambda dst, mt: f"buffer_load_dwordx4 {ar(dst,4)}, v{VX}, s[8:11], s{SX} offen offset:{mt*1024}"
    g.xadv = lambda: f"s_add_u32 s{SX}, s{SX}, 4096"
    g.swapped = lambda nt: nt >= 4
    g.prologue_loads(e)
    g.zero_acc(e)
    g.first_reads(e)
    g.mainloop(e)
    t = VT
    c = f2u(math.log2(math.e) / math.sqrt(32))
    e(f"""
    v_lshrrev_b32 v{t}, 4, v{VL}
    v_lshlrev_b32 v{t}, 9, v{t}
    v_and_b32 v{t+1}, 15, v{VL}
    v_lshl_add_u32 v{t+2}, v{t+1}, 4, v{t}
    v_and_b32 v{t+3}, 7, v{VL}
    v_lshl_add_u32 v{t+3}, v{t+3}, 4, v{t}
    v_bfe_u32 v{t+4}, v{VL}, 3, 1
    v_lshl_add_u32 v{t+3}, v{t+4}, 8, v{t+3}
    s_lshl_b32 s27, s23, 6
    s_lshl_b32 s28, s22, 3
    s_add_u32 s27, s27, s28
    s_lshl_b32 s28, s21, 1
    s_add_u32 s27, s27, s28
    s_lshl_b32 s28, s27, 11
    s_add_u32 s28, s28, {QF}
    s_lshl_b32 s29, s27, 12
    s_add_u32 s29, s29, {KV}
    s_add_u32 s30, s29, 4096
    s_mov_b32 s32, {hex(c)}
    s_mov_b32 s33, {hex(c)}
    s_nop 4
    """)
    P = t + 8
    k = 0
    def pack(dst, a, b, scale=False):
        if scale:
            for r in (a, a + 2, b, b + 2):
                e(f"v_pk_mul_f32 {vr(r,2)}, {vr(r,2)}, s[32:33]")
        e(f"""v_cvt_pk_bf16_f32 v{dst}, v{a}, v{a+1}
        v_cvt_pk_bf16_f32 v{dst+1}, v{a+2}, v{a+3}
        v_cvt_pk_bf16_f32 v{dst+2}, v{b}, v{b+1}
        v_cvt_pk_bf16_f32 v{dst+3}, v{b+2}, v{b+3}""")
    for mt in range(4):
        d = P + 4 * (k % 4); k += 1
        pack(d, g.acc(0, mt), g.acc(1, mt), True)
        e(f"buffer_store_dwordx4 {vr(d,4)}, v{t+2}, s[8:11], s28 offen offset:{(mt>>1)*2048 + (mt&1)*256}")
        d = P + 4 * (k % 4); k += 1
        pack(d, g.acc(2, mt), g.acc(3, mt))
        e(f"buffer_store_dwordx4 {vr(d,4)}, v{t+3}, s[8:11], s{29 + (mt>>1)} offen offset:{(mt&1)*128}")
    for T in range(2):
        for nt in (4, 5):
            d = P + 4 * (k % 4); k += 1
            pack(d, g.acc(nt, 2*T), g.acc(nt, 2*T + 1))
            e(f"buffer_store_dwordx4 {vr(d,4)}, v{t+2}, s[8:11], s{29 + T} offen offset:{2048 + (nt-4)*256}")
    kernel_tail(e, name)
    return name, e.text(), descriptor(name, P + 16, g.na), (256, 256, NS * STG)

def k_attn():
    e = E(); name = "attn_kernel"
    S = [0, 16]; O = [32, 48]; NM = [64, 80]; Pp = [96, 104]; L = [112, 116]; Q = [120, 128]
    KF = [136, 144]; VF = [152, 160]; ONE = 168
    VL, VA, VG, T = 172, 173, 174, 176
    SK, SM, SL = 24, 25, 26
    kernel_head(e, name, 256)
    e("s_load_dwordx2 s[4:5], s[0:1], 72")
    wave_lane(e, VL, 21, T)
    e(f"""
    s_and_b32 s23, s2, 7
    s_lshl_b32 s23, s23, 2
    s_lshr_b32 s27, s2, 6
    s_add_u32 s23, s23, s27
    s_bfe_u32 s22, s2, 0x30003
    v_lshlrev_b32 v{VG}, 4, v{VL}
    v_mov_b32 v{VA}, v{VG}
    s_lshl_b32 s27, s23, 18
    s_add_u32 s34, s27, {KV}
    s_lshl_b32 s{SM}, s21, 12
    s_add_u32 s{SK}, s34, s{SM}
    s_lshl_b32 s27, s23, 6
    s_lshl_b32 s28, s22, 3
    s_add_u32 s27, s27, s28
    s_lshl_b32 s28, s21, 1
    s_add_u32 s27, s27, s28
    s_lshl_b32 s28, s27, 11
    s_add_u32 s28, s28, {QF}
    s_waitcnt lgkmcnt(0)
    """)
    srd(e, 8, 4, 5, WS_BYTES)
    def dma_stage(soff):
        return [f"buffer_load_dwordx4 v{VG}, s[8:11], s{soff} offen offset:{i*1024} lds" for i in range(4)]
    e(f"s_mov_b32 m0, s{SM}\ns_nop 0")
    e.ext(dma_stage(SK))
    for x in range(2):
        for s in range(2):
            e(f"buffer_load_dwordx4 {vr(Q[x]+4*s,4)}, v{VG}, s[8:11], s28 offen offset:{x*2048 + s*1024}")
    for st in range(1, 3):
        e(f"s_add_u32 s{SK}, s{SK}, 16384\ns_add_u32 m0, s{SM}, {st*16384}\ns_nop 0")
        e.ext(dma_stage(SK))
    e(f"""
    v_and_b32 v{T}, 3, v{VL}
    v_bfe_u32 v{T+1}, v{VL}, 2, 1
    v_bfe_u32 v{T+2}, v{VL}, 4, 1
    v_xor_b32 v{T+1}, v{T+1}, v{T+2}
    v_or_b32 v{T}, v{T}, v{T+1}
    v_mov_b32 v{T+1}, 0x3f803f80
    v_cmp_eq_u32 vcc, 0, v{T}
    s_nop 1
    v_cndmask_b32 v{ONE}, 0, v{T+1}, vcc
    v_mov_b32 v{ONE+1}, v{ONE}
    v_mov_b32 v{ONE+2}, v{ONE}
    v_mov_b32 v{ONE+3}, v{ONE}
    """)
    def zero_state():
        for x in range(2):
            for r in range(16): e(f"v_mov_b32 v{O[x]+r}, 0")
            for r in range(4): e(f"v_mov_b32 v{L[x]+r}, 0")
    zero_state()
    for r in range(8):
        e(f"v_mov_b32 v{Pp[1]+r}, 0\nv_mov_b32 v{VF[1]+r}, 0")
    def qk(x, kf, c):
        return [f"v_mfma_f32_32x32x16_bf16 {vr(S[x],16)}, {vr(kf,4)}, {vr(Q[x],4)}, {c}",
                f"v_mfma_f32_32x32x16_bf16 {vr(S[x],16)}, {vr(kf+4,4)}, {vr(Q[x]+4,4)}, {vr(S[x],16)}"]
    def pv(x, vf):
        return [f"v_mfma_f32_32x32x16_bf16 {vr(O[x],16)}, {vr(vf,4)}, {vr(Pp[x],4)}, {vr(O[x],16)}",
                f"v_mfma_f32_32x32x16_bf16 {vr(O[x],16)}, {vr(vf+4,4)}, {vr(Pp[x]+4,4)}, {vr(O[x],16)}",
                f"v_mfma_f32_16x16x32_bf16 {vr(L[x],4)}, {vr(ONE,4)}, {vr(Pp[x],4)}, {vr(L[x],4)}",
                f"v_mfma_f32_16x16x32_bf16 {vr(L[x],4)}, {vr(ONE,4)}, {vr(Pp[x]+4,4)}, {vr(L[x],4)}"]
    def tile_max(x, m, init):
        if init:
            e(f"v_max3_f32 v{m}, v{S[x]}, v{S[x]+1}, v{S[x]+2}\nv_max_f32 v{m}, v{m}, v{S[x]+3}")
        else:
            e(f"v_max3_f32 v{m}, v{S[x]}, v{S[x]+1}, v{m}\nv_max3_f32 v{m}, v{S[x]+2}, v{S[x]+3}, v{m}")
        for r in range(4, 16, 2):
            e(f"v_max3_f32 v{m}, v{S[x]+r}, v{S[x]+r+1}, v{m}")
    def set_negmax(x, m):
        e(f"""v_mov_b32 v{T+4}, v{m}
        s_nop 1
        v_permlane32_swap_b32 v{m}, v{T+4}
        v_max_f32 v{m}, v{m}, v{T+4}""")
        for r in range(16):
            e(f"v_sub_f32 v{NM[x]+r}, 0, v{m}")
    e("s_waitcnt vmcnt(8)\ns_barrier")
    e(f"ds_read_b128 {vr(KF[0],4)}, v{VA}\nds_read_b128 {vr(KF[0]+4,4)}, v{VA} offset:1024\ns_waitcnt lgkmcnt(0)")
    e.ext(qk(0, KF[0], "0")); e.ext(qk(1, KF[0], "0"))
    e("s_nop 15")
    tile_max(0, T, True); tile_max(1, T+1, True)
    set_negmax(0, T); set_negmax(1, T+1)
    e("s_nop 1")
    e.ext(qk(0, KF[0], vr(NM[0], 16)))
    e(f"s_mov_b32 s{SL}, 0\ns_nop 15")
    def phase(x, mf, extra):
        ex = [f"v_exp_f32 v{S[x]+r}, v{S[x]+r}" for r in range(16)]
        cv = [f"v_cvt_pk_bf16_f32 v{Pp[x]+r}, v{S[x]+2*r}, v{S[x]+2*r+1}" for r in range(8)]
        groups = [ex[0:3], ex[3:6], [ex[6], ex[7], cv[0], cv[1]], [ex[8], ex[9], cv[2], cv[3]], [ex[10]],
                  [ex[11], ex[12], ex[13], cv[4], ex[14], cv[5], ex[15], cv[6], None, cv[7]]]
        out = []
        for i in range(6):
            out.append(mf[i])
            out += extra[i]
            for ins in groups[i]:
                if ins is None:
                    out += extra[6]
                else:
                    out.append(ins)
        return out
    e(".p2align 6\nattn_loop:")
    for tt in range(4):
        kc, kn = KF[tt & 1], KF[(tt + 1) & 1]
        vc, vp = VF[tt & 1], VF[(tt + 1) & 1]
        rdv = [f"ds_read_b128 {vr(vc,4)}, v{VA} offset:{tt*4096 + 2048}", f"ds_read_b128 {vr(vc+4,4)}, v{VA} offset:{tt*4096 + 3072}"]
        ko = ((tt + 1) & 3) * 4096
        rdk = [f"ds_read_b128 {vr(kn,4)}, v{VA} offset:{ko}", f"ds_read_b128 {vr(kn+4,4)}, v{VA} offset:{ko + 1024}"]
        if tt == 3:
            extra = [[rdv[0]], [rdv[1], f"v_add_u32 v{VA}, 0x4000, v{VA}"], [f"v_and_b32 v{VA}, 0xffff, v{VA}", rdk[0]], [rdk[1]], [], [], []]
        else:
            extra = [[rdk[0]], [rdk[1]], [rdv[0]], [rdv[1]], [], [], []]
        e.ext(phase(0, qk(1, kc, vr(NM[1], 16)) + pv(1, vp), extra))
        e("s_waitcnt lgkmcnt(0)")
        extra = [[] for _ in range(7)]
        if tt == 2:
            extra = [[f"s_add_u32 s{SK}, s{SK}, 16384", f"s_add_u32 s29, s{SL}, 3"],
                     [f"s_cmp_lt_u32 s29, 16", f"s_cselect_b32 s27, s{SK}, {hex(WS_BYTES)}"],
                     ["s_and_b32 s29, s29, 3", "s_lshl_b32 s29, s29, 14"], [f"s_add_u32 m0, s29, s{SM}"], [], [],
                     ["s_waitcnt vmcnt(4)"]]
        if tt == 3:
            d = dma_stage(27)
            extra = [[d[0]], [d[1]], [d[2]], [d[3]], [f"s_add_u32 s{SL}, s{SL}, 1"], [], [f"s_cmp_lt_u32 s{SL}, 16"]]
        e.ext(phase(1, qk(0, kn, vr(NM[0], 16)) + pv(0, vc), extra))
        if tt == 2:
            e("s_barrier")
    e("s_cbranch_scc1 attn_loop")
    e("s_nop 1")
    e.ext(pv(1, VF[1]))
    e(f"s_nop 15\nv_mov_b32 v{T}, 0")
    for x in range(2):
        for r in range(16):
            e(f"v_fma_f32 v{T}, v{O[x]+r}, 0, v{T}")
    e(f"""
    v_max_f32 v{T+1}, v{L[0]}, v{L[1]}
    v_add_f32 v{T+2}, v{L[0]}, v{L[1]}
    v_fma_f32 v{T}, v{T+2}, 0, v{T}
    v_add_f32 v{T}, v{T}, v{T+1}
    v_mov_b32 v{T+1}, {hex(f2u(2.0**100))}
    v_cmp_nlt_f32 vcc, v{T}, v{T+1}
    s_cbranch_vccnz attn_slow
    attn_out:
    """)
    e(f"""
    v_rcp_f32 v{T}, v{L[0]}
    v_rcp_f32 v{T+2}, v{L[1]}
    v_bfe_u32 v{T+4}, v{VL}, 4, 1
    v_lshlrev_b32 v{T+4}, 10, v{T+4}
    v_and_b32 v{T+5}, 15, v{VL}
    v_lshl_add_u32 v{T+4}, v{T+5}, 4, v{T+4}
    v_lshrrev_b32 v{T+5}, 5, v{VL}
    v_lshl_add_u32 v{T+4}, v{T+5}, 8, v{T+4}
    s_lshl_b32 s27, s22, 3
    s_lshl_b32 s28, s21, 1
    s_add_u32 s27, s27, s28
    s_lshl_b32 s27, s27, 16
    s_lshl_b32 s28, s23, 11
    s_add_u32 s27, s27, s28
    s_add_u32 s28, s27, {OF}
    s_add_u32 s29, s28, 65536
    """)
    for x in range(2):
        for r in range(0, 16, 2):
            e(f"v_pk_mul_f32 {vr(O[x]+r,2)}, {vr(O[x]+r,2)}, {vr(T+2*x,2)} op_sel_hi:[1,0]")
        for r in range(8):
            e(f"v_cvt_pk_bf16_f32 v{Pp[x]+r}, v{O[x]+2*r}, v{O[x]+2*r+1}")
        for ci in range(2):
            e(f"buffer_store_dwordx4 {vr(Pp[x]+4*ci,4)}, v{T+4}, s[8:11], s{28+x} offen offset:{ci*512}")
    e("s_endpgm")
    e("attn_slow:\ns_waitcnt vmcnt(0) lgkmcnt(0)")
    e(f"v_mov_b32 v{T}, 0xff800000\nv_mov_b32 v{T+1}, 0xff800000\ns_mov_b32 s27, s34\ns_mov_b32 s{SL}, 0")
    e("attn_slow_max:")
    e(f"""buffer_load_dwordx4 {vr(KF[0],4)}, v{VG}, s[8:11], s27 offen
    buffer_load_dwordx4 {vr(KF[0]+4,4)}, v{VG}, s[8:11], s27 offen offset:1024
    s_waitcnt vmcnt(0)""")
    e.ext(qk(0, KF[0], "0")); e.ext(qk(1, KF[0], "0"))
    e("s_nop 15")
    tile_max(0, T, False); tile_max(1, T+1, False)
    e(f"s_add_u32 s27, s27, 4096\ns_add_u32 s{SL}, s{SL}, 1\ns_cmp_lt_u32 s{SL}, 64\ns_cbranch_scc1 attn_slow_max")
    set_negmax(0, T); set_negmax(1, T+1)
    zero_state()
    e(f"s_mov_b32 s27, s34\ns_mov_b32 s{SL}, 0")
    e("attn_slow_acc:")
    for i, r in enumerate((KF[0], KF[0]+4, VF[0], VF[0]+4)):
        e(f"buffer_load_dwordx4 {vr(r,4)}, v{VG}, s[8:11], s27 offen offset:{i*1024}")
    e("s_waitcnt vmcnt(0)")
    e.ext(qk(0, KF[0], vr(NM[0], 16))); e.ext(qk(1, KF[0], vr(NM[1], 16)))
    e("s_nop 15")
    for x in range(2):
        for r in range(16): e(f"v_exp_f32 v{S[x]+r}, v{S[x]+r}")
        e("s_nop 0")
        for r in range(8): e(f"v_cvt_pk_bf16_f32 v{Pp[x]+r}, v{S[x]+2*r}, v{S[x]+2*r+1}")
    e("s_nop 1")
    e.ext(pv(0, VF[0])); e.ext(pv(1, VF[0]))
    e(f"s_nop 15\ns_add_u32 s27, s27, 4096\ns_add_u32 s{SL}, s{SL}, 1\ns_cmp_lt_u32 s{SL}, 64\ns_cbranch_scc1 attn_slow_acc")
    e("s_branch attn_out")
    kernel_tail(e, name)
    return name, e.text(), descriptor(name, T + 8, 0), (256, 256, 65536)

def setup_128x64(e, g, VL, VX, VD, VR, VT, SX, SW, SM, xbase, xblock, lds0=0):
    STG = 8192
    e("""
    s_bfe_u32 s22, s2, 0x20001
    s_lshl_b32 s22, s22, 2
    s_bfe_u32 s23, s2, 0x20003
    s_add_u32 s22, s22, s23
    s_and_b32 s23, s2, 1
    s_lshl_b32 s23, s23, 3
    s_lshr_b32 s27, s2, 5
    s_add_u32 s23, s23, s27
    """)
    t = VT
    e(f"""
    s_lshl_b32 s35, s22, 2
    s_add_u32 s35, s35, s21
    s_mul_i32 s{SX}, s35, {xblock}
    s_add_u32 s{SX}, s{SX}, {xbase}
    v_lshlrev_b32 v{VX}, 4, v{VL}
    s_lshl_b32 s{SM}, s21, 11
    s_lshl_b32 s{SW}, s23, 7
    s_lshl_b32 s28, s21, 4
    v_lshrrev_b32 v{t}, 3, v{VL}
    v_add_u32 v{t}, s28, v{t}
    v_bfe_u32 v{t+1}, v{t}, 1, 2
    v_bfe_u32 v{t+2}, v{VL}, 1, 2
    v_xor_b32 v{t+1}, v{t+1}, v{t+2}
    v_lshlrev_b32 v{t+1}, 5, v{t+1}
    v_and_b32 v{t+2}, 1, v{VL}
    v_lshl_add_u32 v{t+1}, v{t+2}, 4, v{t+1}
    v_lshl_add_u32 v{VD}, v{t}, 11, v{t+1}
    v_add_u32 v{VD+1}, {8*2048}, v{VD}
    v_bfe_u32 v{t}, v{VL}, 2, 3
    v_lshrrev_b32 v{t+1}, 1, v{t}
    v_lshrrev_b32 v{t+2}, 5, v{VL}
    v_lshl_add_u32 v{t}, v{t+2}, 4, v{t}
    v_lshlrev_b32 v{t}, 7, v{t}
    v_and_b32 v{t+2}, 3, v{VL}
    v_lshl_add_u32 v{t}, v{t+2}, 3, v{t}
    """)
    for nt in range(4):
        e(f"v_xor_b32 v{t+2}, {nt}, v{t+1}\nv_lshl_add_u32 v{VR+nt}, v{t+2}, 5, v{t}")
    def wread(nt, dst, slot, kk):
        off = lds0 + slot * STG + kk * 4096
        return [f"ds_read_b64_tr_b16 {ar(dst,2)}, v{VR+nt} offset:{off}",
                f"ds_read_b64_tr_b16 {ar(dst+2,2)}, v{VR+nt} offset:{off + 1024}"]
    g.wread = wread
    g.dma = lambda i, slot: (f"s_add_u32 m0, s{SM}, {lds0 + slot*STG + i*1024}", f"buffer_load_dwordx4 v{VD+i}, s[12:15], s{SW} offen lds")
    g.wadv = lambda: f"s_add_u32 s{SW}, s{SW}, {64*2048}"
    g.xload = lambda dst, mt: f"buffer_load_dwordx4 {ar(dst,4)}, v{VX}, s[8:11], s{SX} offen offset:{mt*1024}"
    g.xadv = lambda: f"s_add_u32 s{SX}, s{SX}, 2048"

def red_groups(e, v, t):
    e(f"""v_mov_b32 v{t}, v{v}
    s_nop 1
    v_permlane16_swap_b32 v{v}, v{t}
    v_add_f32 v{v}, v{v}, v{t}
    v_mov_b32 v{t}, v{v}
    s_nop 1
    v_permlane32_swap_b32 v{v}, v{t}
    v_add_f32 v{v}, v{v}, v{t}""")

def k_oproj(NS=4, XD=8):
    e = E(); name = "oproj_kernel"
    g = Gemm("oproj", MT=2, NT=4, KS=32, NS=NS, XD=XD, ndma=2, acc0=0, NX=1, frac=0.7)
    VL, VX, VD, VR, VB, VXD, VMU, VT = 40, 41, 42, 44, 48, 49, 50, 52
    SX, SW, SM = 24, 25, 26
    LWB = NS * 8192; LX = LWB + 4096
    kernel_head(e, name, 256)
    e("s_load_dwordx2 s[4:5], s[0:1], 72\ns_load_dwordx2 s[6:7], s[0:1], 16\ns_load_dwordx2 s[36:37], s[0:1], 0")
    wave_lane(e, VL, 21, VT)
    setup_128x64(e, g, VL, VX, VD, VR, VT, SX, SW, SM, OF, 65536)
    base_read = g.wread
    def wread(nt, dst, slot, kk):
        if nt < 4:
            return base_read(nt, dst, slot, kk)
        return [f"ds_read_b128 {ar(dst,4)}, v{VB}", f"v_add_u32 v{VB}, 128, v{VB}"]
    g.wread = wread
    t = VT
    e(f"""
    v_and_b32 v{t}, 1, v{VL}
    v_lshlrev_b32 v{t}, 6, v{t}
    v_lshrrev_b32 v{t+1}, 4, v{VL}
    v_lshl_add_u32 v{t}, v{t+1}, 4, v{t}
    v_add_u32 v{VB}, {LWB}, v{t}
    v_lshrrev_b32 v{t}, 3, v{VL}
    v_lshrrev_b32 v{t+1}, 4, v{VL}
    v_and_b32 v{t+2}, 7, v{VL}
    v_xor_b32 v{t+1}, v{t+1}, v{t+2}
    v_lshlrev_b32 v{t+1}, 4, v{t+1}
    v_lshl_add_u32 v{VXD}, v{t}, 11, v{t+1}
    v_and_b32 v{t}, 15, v{VL}
    v_lshlrev_b32 v{t+8}, 2, v{t}
    s_lshl_b32 s29, s21, 10
    s_add_u32 s30, s29, {WB}
    s_lshl_b32 s31, s35, 16
    s_lshl_b32 s28, s23, 7
    s_add_u32 s31, s31, s28
    s_lshl_b32 s32, s21, 12
    s_lshl_b32 s33, s35, 7
    s_add_u32 s34, s33, {MUX}
    s_waitcnt lgkmcnt(0)
    """)
    srd(e, 8, 4, 5, WS_BYTES); srd(e, 12, 6, 7, 0x200000); srd(e, 16, 36, 37, 0x400000)
    first = [(f"s_add_u32 m0, s29, {LWB}", None), (f"buffer_load_dwordx4 v{VX}, s[8:11], s30 offen lds", ("wb", 0))]
    tail = []
    for i in range(4):
        if i:
            tail.append((f"v_xor_b32 v{VXD}, 64, v{VXD}", None))
            tail.append((f"s_add_u32 s31, s31, {8*2048}", None))
        tail.append((f"s_add_u32 m0, s32, {LX + i*1024}", None))
        tail.append((f"buffer_load_dwordx4 v{VXD}, s[16:19], s31 offen lds", ("xt", 0)))
    g.extra_tail[26] = tail[:6]
    g.extra_tail[27] = tail[6:]
    g.extra_tail[28] = [(f"buffer_load_dword v{VMU+mt}, v{t+8}, s[8:11], s34 offen offset:{mt*64}", ("mu", 0)) for mt in range(2)]
    g.prologue_loads(e, first=first)
    g.zero_acc(e)
    g.first_reads(e, tags=[("wb", 0)])
    g.mainloop(e)
    XR = t + 10
    e(f"""
    v_and_b32 v{t}, 15, v{VL}
    v_lshrrev_b32 v{t+1}, 1, v{t}
    v_lshrrev_b32 v{t+2}, 5, v{VL}
    v_xor_b32 v{t+1}, v{t+1}, v{t+2}
    v_lshlrev_b32 v{t}, 7, v{t}
    v_bfe_u32 v{t+2}, v{VL}, 4, 1
    v_lshl_add_u32 v{t}, v{t+2}, 3, v{t}
    v_add_u32 v{t}, s32, v{t}
    s_waitcnt vmcnt(0)
    """)
    for nt in range(4):
        e(f"v_xor_b32 v{t+2}, {2*nt}, v{t+1}\nv_lshl_add_u32 v{t+2}, v{t+2}, 4, v{t}")
        for mt in range(2):
            e(f"ds_read_b64 {vr(XR + (nt*2+mt)*2, 2)}, v{t+2} offset:{LX + mt*2048}")
    e("s_nop 4")
    for mt in range(2):
        a = g.acc(4, mt)
        e(f"v_add_f32 v{a}, v{a}, v{a+1}\nv_add_f32 v{VMU+mt}, v{VMU+mt}, v{a}")
    e(f"""
    s_lshr_b32 s27, s35, 1
    s_lshl_b32 s27, s27, 17
    s_and_b32 s28, s35, 1
    s_lshl_b32 s28, s28, 11
    s_add_u32 s27, s27, s28
    s_lshl_b32 s28, s23, 13
    s_add_u32 s27, s27, s28
    s_add_u32 s28, s27, {HC}
    s_add_u32 s29, s28, 4096
    s_waitcnt lgkmcnt(0)
    """)
    PK = XR + 16
    SS = t + 4
    for mt in range(2):
        for nt in range(4):
            a = g.acc(nt, mt); xr = XR + (nt*2+mt)*2
            e(f"""v_lshlrev_b32 v{t}, 16, v{xr}
            v_and_b32 v{t+1}, 0xffff0000, v{xr}
            v_lshlrev_b32 v{t+2}, 16, v{xr+1}
            v_and_b32 v{t+3}, 0xffff0000, v{xr+1}""")
            for r in range(4):
                e(f"v_sub_f32 v{a+r}, v{a+r}, v{VMU+mt}")
            e(f"v_pk_add_f32 {vr(a,2)}, {vr(a,2)}, {vr(t,2)}\nv_pk_add_f32 {vr(a+2,2)}, {vr(a+2,2)}, {vr(t+2,2)}")
            for r in range(4):
                if nt == 0 and r == 0:
                    e(f"v_mul_f32 v{SS+mt}, v{a}, v{a}")
                else:
                    e(f"v_fmac_f32 v{SS+mt}, v{a+r}, v{a+r}")
            d = PK + (mt*2 + (nt >> 1)) * 4 + (nt & 1) * 2
            e(f"v_cvt_pk_bf16_f32 v{d}, v{a}, v{a+1}\nv_cvt_pk_bf16_f32 v{d+1}, v{a+2}, v{a+3}")
            if nt & 1:
                e(f"buffer_store_dwordx4 {vr(d-2,4)}, v{VX}, s[8:11], s{28 + (nt>>1)} offen offset:{mt*1024}")
    for mt in range(2):
        red_groups(e, SS + mt, t)
    e(f"""
    v_lshlrev_b32 v{t}, 4, v{t+8}
    s_lshl_b32 s27, s35, 11
    s_lshl_b32 s28, s23, 2
    s_add_u32 s27, s27, s28
    s_add_u32 s27, s27, {SSQ}
    s_add_u32 s28, s33, {MU2}
    v_cmp_gt_u32 vcc, 16, v{VL}
    s_and_saveexec_b64 s[38:39], vcc
    buffer_store_dword v{SS}, v{t}, s[8:11], s27 offen
    buffer_store_dword v{SS+1}, v{t}, s[8:11], s27 offen offset:1024
    s_cmp_lg_u32 s23, 0
    s_cbranch_scc1 oproj_kernel_end
    buffer_store_dword v{VMU}, v{t+8}, s[8:11], s28 offen
    buffer_store_dword v{VMU+1}, v{t+8}, s[8:11], s28 offen offset:64
    """)
    kernel_tail(e, name)
    return name, e.text(), descriptor(name, PK + 16, g.na), (256, 256, LX + 16384)

def k_gateup(NS=4, XD=4):
    e = E(); name = "gateup_kernel"
    g = Gemm("gateup", MT=4, NT=14, KS=32, NS=NS, XD=XD, ndma=7, acc0=0, frac=0.85)
    VL, VX, VD, VR, VT = 224, 225, 226, 233, 236
    SX, SW, SM = 24, 25, 26
    STG = 28672
    kernel_head(e, name, 256)
    e("s_load_dwordx2 s[4:5], s[0:1], 72\ns_load_dwordx4 s[36:39], s[0:1], 32")
    wave_lane(e, VL, 21, VT)
    e("""
    s_and_b32 s22, s2, 1
    s_lshl_b32 s22, s22, 2
    s_bfe_u32 s23, s2, 0x20003
    s_add_u32 s22, s22, s23
    s_bfe_u32 s23, s2, 0x20001
    s_lshl_b32 s23, s23, 3
    s_lshr_b32 s27, s2, 5
    s_add_u32 s23, s23, s27
    """)
    t = VT
    e(f"""
    s_lshl_b32 s35, s22, 2
    s_add_u32 s35, s35, s21
    s_lshl_b32 s{SX}, s35, 17
    s_add_u32 s{SX}, s{SX}, {HC}
    v_lshlrev_b32 v{VX}, 4, v{VL}
    s_mul_i32 s{SM}, s21, 7168
    s_and_b32 s28, s21, 1
    s_mul_i32 s28, s28, 448
    s_mul_i32 s{SW}, s23, 224
    """)
    for i in range(7):
        e(f"""
        v_add_u32 v{t}, s28, v{VL}
        v_add_u32 v{t}, {64*i}, v{t}
        v_mul_u32_u24 v{t+1}, 4682, v{t}
        v_lshrrev_b32 v{t+1}, 16, v{t+1}
        v_mul_u32_u24 v{t+2}, 14, v{t+1}
        v_sub_u32 v{t+2}, v{t}, v{t+2}
        v_mul_u32_u24 v{t+1}, 7168, v{t+1}
        v_lshl_add_u32 v{VD+i}, v{t+2}, 4, v{t+1}
        """)
    e(f"""
    v_lshrrev_b32 v{t}, 2, v{VL}
    v_mul_u32_u24 v{t}, 224, v{t}
    v_and_b32 v{t+1}, 3, v{VL}
    v_lshl_add_u32 v{VR}, v{t+1}, 3, v{t}
    v_add_u32 v{VR+1}, {2*STG}, v{VR}
    v_add_u32 v{VR+2}, {4*STG}, v{VR}
    s_waitcnt lgkmcnt(0)
    s_cmp_lt_u32 s21, 2
    s_cselect_b32 s6, s36, s38
    s_cselect_b32 s7, s37, s39
    """)
    srd(e, 8, 4, 5, WS_BYTES); srd(e, 12, 6, 7, 1024 * 7168)
    def wread(nt, dst, slot, kk):
        off = (slot & 1) * STG + (nt // 7) * 14336 + kk * 7168 + (nt % 7) * 32
        v = VR + (slot >> 1)
        return [f"ds_read_b64_tr_b16 {ar(dst,2)}, v{v} offset:{off}",
                f"ds_read_b64_tr_b16 {ar(dst+2,2)}, v{v} offset:{off + 3584}"]
    g.wread = wread
    g.dma = lambda i, slot: (f"s_add_u32 m0, s{SM}, {slot*STG + i*1024}", f"buffer_load_dwordx4 v{VD+i}, s[12:15], s{SW} offen lds")
    g.wadv = lambda: f"s_add_u32 s{SW}, s{SW}, {64*7168}"
    g.xload = lambda dst, mt: f"buffer_load_dwordx4 {ar(dst,4)}, v{VX}, s[8:11], s{SX} offen offset:{mt*1024}"
    g.xadv = lambda: f"s_add_u32 s{SX}, s{SX}, 4096"
    g.prologue_loads(e)
    g.zero_acc(e)
    g.first_reads(e)
    g.mainloop(e)
    e(f"""
    v_lshrrev_b32 v{t}, 5, v{VL}
    v_lshlrev_b32 v{t}, 10, v{t}
    v_and_b32 v{t+1}, 31, v{VL}
    v_lshl_add_u32 v{t}, v{t+1}, 4, v{t}
    v_add_u32 v{t+1}, 229376, v{t}
    s_mul_i32 s27, s35, {2*229376}
    s_add_u32 s27, s27, {ACT}
    s_mul_i32 s28, s23, 7
    """)
    k = 0
    for ft in range(7):
        e(f"""s_add_u32 s29, s28, {ft}
        s_lshr_b32 s30, s29, 1
        s_lshl_b32 s30, s30, 11
        s_and_b32 s29, s29, 1
        s_lshl_b32 s29, s29, 9
        s_add_u32 s30, s30, s29
        s_add_u32 s{40+ft}, s30, s27""")
    for ft in range(7):
        for a in range(2):
            d = t + 4 + 4 * (k % 4); k += 1
            for h in range(2):
                ga, ua = g.acc(ft, 2*a + h), g.acc(ft + 7, 2*a + h)
                e(f"""v_pk_mul_f32 {vr(ga,2)}, {vr(ga,2)}, {vr(ua,2)}
                v_pk_mul_f32 {vr(ga+2,2)}, {vr(ga+2,2)}, {vr(ua+2,2)}
                v_cvt_pk_bf16_f32 v{d+2*h}, v{ga}, v{ga+1}
                v_cvt_pk_bf16_f32 v{d+2*h+1}, v{ga+2}, v{ga+3}""")
            e(f"""s_nop 1
            v_permlane32_swap_b32 v{d}, v{d+2}
            v_permlane32_swap_b32 v{d+1}, v{d+3}
            buffer_store_dwordx4 {vr(d,4)}, v{t+a}, s[8:11], s{40+ft} offen""")
    kernel_tail(e, name)
    return name, e.text(), descriptor(name, 256, g.na), (256, 256, NS * STG)

def k_down(NS=4, XD=8):
    e = E(); name = "down_kernel"
    g = Gemm("down", MT=2, NT=4, KS=112, NS=NS, XD=XD, ndma=2, acc0=0, frac=0.7)
    VL, VX, VD, VR, VMU, VT = 32, 33, 34, 36, 40, 44
    HR, SQ = 56, 72
    SX, SW, SM = 24, 25, 26
    LO = NS * 8192
    kernel_head(e, name, 256)
    e("s_load_dwordx2 s[4:5], s[0:1], 72\ns_load_dwordx4 s[36:39], s[0:1], 48")
    wave_lane(e, VL, 21, VT)
    setup_128x64(e, g, VL, VX, VD, VR, VT, SX, SW, SM, ACT, 229376)
    t = VT
    e(f"""
    s_lshr_b32 s27, s35, 1
    s_lshl_b32 s27, s27, 17
    s_and_b32 s28, s35, 1
    s_lshl_b32 s28, s28, 11
    s_add_u32 s27, s27, s28
    s_lshl_b32 s28, s23, 13
    s_add_u32 s27, s27, s28
    s_add_u32 s30, s27, {HC}
    s_add_u32 s31, s30, 4096
    s_lshl_b32 s32, s35, 7
    s_add_u32 s32, s32, {MU2}
    s_lshl_b32 s33, s35, 11
    s_add_u32 s33, s33, {SSQ}
    v_and_b32 v{t}, 15, v{VL}
    v_lshlrev_b32 v{t+8}, 2, v{t}
    v_lshrrev_b32 v{t+1}, 4, v{VL}
    v_lshlrev_b32 v{t+1}, 4, v{t+1}
    v_lshl_add_u32 v{t+9}, v{t}, 6, v{t+1}
    s_waitcnt lgkmcnt(0)
    """)
    srd(e, 8, 4, 5, WS_BYTES); srd(e, 12, 36, 37, 3584 * 2048); srd(e, 16, 38, 39, 0x400000)
    g.extra_tail[106] = [(f"buffer_load_dwordx4 {vr(SQ + 4*mt,4)}, v{t+9}, s[8:11], s33 offen offset:{mt*1024}", ("r", 0)) for mt in range(2)] + \
                        [(f"buffer_load_dword v{VMU+mt}, v{t+8}, s[8:11], s32 offen offset:{mt*64}", ("r", 0)) for mt in range(2)]
    g.extra_tail[107] = [(f"buffer_load_dwordx4 {vr(HR + (mt*2+p)*4,4)}, v{VX}, s[8:11], s{30+p} offen offset:{mt*1024}", ("r", 0)) for mt in range(2) for p in range(2)]
    g.prologue_loads(e)
    g.zero_acc(e)
    g.first_reads(e)
    g.mainloop(e)
    e("s_waitcnt vmcnt(0)")
    for mt in range(2):
        q = SQ + 4 * mt
        e(f"v_add_f32 v{q}, v{q}, v{q+1}\nv_add_f32 v{q+2}, v{q+2}, v{q+3}\nv_add_f32 v{q}, v{q}, v{q+2}")
        red_groups(e, q, t)
        e(f"v_mov_b32 v{q+1}, {hex(f2u(1e-5))}\nv_fmac_f32 v{q+1}, {hex(f2u(1/1024))}, v{q}\nv_rcp_f32 v{q}, v{q+1}")
    e(f"""
    s_lshl_b32 s27, s21, 12
    s_add_u32 s27, s27, {LO}
    v_and_b32 v{t}, 15, v{VL}
    v_and_b32 v{t+1}, 7, v{VL}
    v_lshrrev_b32 v{t+2}, 5, v{VL}
    v_xor_b32 v{t+1}, v{t+1}, v{t+2}
    v_lshlrev_b32 v{t}, 7, v{t}
    v_bfe_u32 v{t+2}, v{VL}, 4, 1
    v_lshl_add_u32 v{t}, v{t+2}, 3, v{t}
    v_add_u32 v{t}, s27, v{t}
    """)
    for nt in range(4):
        e(f"v_xor_b32 v{t+2}, {2*nt}, v{t+1}\nv_lshl_add_u32 v{VR+nt}, v{t+2}, 4, v{t}")
    for mt in range(2):
        for nt in range(4):
            a = g.acc(nt, mt); hr = HR + (mt*2 + (nt >> 1)) * 4 + (nt & 1) * 2
            e(f"""v_lshlrev_b32 v{t}, 16, v{hr}
            v_and_b32 v{t+1}, 0xffff0000, v{hr}
            v_lshlrev_b32 v{t+2}, 16, v{hr+1}
            v_and_b32 v{t+3}, 0xffff0000, v{hr+1}""")
            for r in range(4):
                e(f"v_add_f32 v{t+r}, v{t+r}, v{VMU+mt}")
            for r in range(4):
                e(f"v_fmac_f32 v{t+r}, v{a+r}, v{SQ+4*mt}")
            e(f"""v_cvt_pk_bf16_f32 v{a}, v{t}, v{t+1}
            v_cvt_pk_bf16_f32 v{a+1}, v{t+2}, v{t+3}
            ds_write_b64 v{VR+nt}, {vr(a,2)} offset:{mt*2048}""")
    e(f"""
    v_lshrrev_b32 v{t}, 3, v{VL}
    v_and_b32 v{t+1}, 7, v{VL}
    v_xor_b32 v{t+2}, v{t+1}, v{t}
    v_lshlrev_b32 v{t+2}, 4, v{t+2}
    v_lshl_add_u32 v{t+2}, v{t}, 7, v{t+2}
    v_add_u32 v{t+2}, s27, v{t+2}
    v_lshlrev_b32 v{t+1}, 4, v{t+1}
    v_lshl_add_u32 v{t+1}, v{t}, 11, v{t+1}
    s_lshl_b32 s28, s35, 16
    s_lshl_b32 s29, s23, 7
    s_add_u32 s28, s28, s29
    s_waitcnt lgkmcnt(0)
    """)
    for i in range(4):
        e(f"ds_read_b128 {vr(HR+4*i,4)}, v{t+2} offset:{i*1024}")
    for i in range(4):
        e(f"s_waitcnt lgkmcnt({3-i})\nbuffer_store_dwordx4 {vr(HR+4*i,4)}, v{t+1}, s[16:19], s28 offen")
        if i < 3:
            e(f"s_add_u32 s28, s28, {8*2048}")
    kernel_tail(e, name)
    return name, e.text(), descriptor(name, 80, g.na), (256, 256, LO + 16384)

def build(kernels):
    head = []
    for name, _, _, (grid, block, lds) in kernels:
        head.append(f"; @launch kernel={name} grid=({grid},1,1) block=({block},1,1) lds={lds}")
    out = "\n".join(head) + "\n"
    out += "; generated by dev/gen.py (hand-written instruction templates, unrolled by script)\n"
    out += '.amdgcn_target "amdgcn-amd-amdhsa--gfx950"\n'
    seen = set()
    for name, text, _, _ in kernels:
        if name not in seen:
            out += text
            seen.add(name)
    seen = set()
    for name, _, desc, _ in kernels:
        if name not in seen:
            out += desc
            seen.add(name)
    return out

def default_kernels():
    return [k_prep(), k_qkv(), k_attn(), k_oproj(), k_gateup(), k_down()]

if __name__ == "__main__":
    path = sys.argv[1] if len(sys.argv) > 1 else f"cdna_kernels/{NAME}.s"
    open(path, "w").write(build(default_kernels()))
    print("wrote", path)
```

```python
import sys, math, struct

NAME = "sequential_preLN__softmax_full_mha__glu_gated_bilinear__prompt"

XN   = 0x0000000
QF   = 0x0400000
KV   = 0x0800000
OF   = 0x1000000
HC   = 0x1400000
ACT  = 0x1800000
MUX  = 0x2600000
MU2  = 0x2602000
WB   = 0x2604000
SSQ  = 0x2610000
WS_BYTES = 0x2640000

def f2u(x):
    return struct.unpack("<I", struct.pack("<f", x))[0]

class E:
    def __init__(self):
        self.l = []
    def __call__(self, s):
        for line in s.strip("\n").split("\n"):
            line = line.strip()
            if not line:
                continue
            if line.endswith(":") or line.startswith("."):
                self.l.append(line)
            else:
                self.l.append("    " + line)
    def ext(self, lines):
        for x in lines:
            self(x)
    def text(self):
        return "\n".join(self.l) + "\n"

def vr(b, n=1, f="v"):
    return f"{f}{b}" if n == 1 else f"{f}[{b}:{b+n-1}]"
def ar(b, n=1):
    return vr(b, n, "a")

def kernel_head(e, name, nwg):
    e(f".text\n.globl {name}\n.p2align 8\n.type {name},@function\n{name}:")
    e(f"s_cmp_ge_u32 s2, {nwg}\ns_cbranch_scc1 {name}_end")
    stamp(e, 0)

def kernel_tail(e, name):
    e(f"{name}_end:\ns_endpgm")

def descriptor(name, nv, na, ns=96):
    acc = max(4, (nv + 3) // 4 * 4)
    tot = acc + na if na else nv
    return f""".section .rodata,"a"
.p2align 6
.amdhsa_kernel {name}
  .amdhsa_next_free_vgpr {tot}
  .amdhsa_next_free_sgpr {ns}
  .amdhsa_accum_offset {acc}
  .amdhsa_group_segment_fixed_size 0
  .amdhsa_kernarg_size 80
  .amdhsa_user_sgpr_count 2
  .amdhsa_user_sgpr_kernarg_segment_ptr 1
  .amdhsa_system_sgpr_workgroup_id_x 1
  .amdhsa_float_denorm_mode_32 3
  .amdhsa_ieee_mode 0
.end_amdhsa_kernel
"""

PROF = 0x2800000
PROFILE = False
_kidx = [0]
def stamp(e, i):
    if PROFILE:
        e(f"s_memtime s[{64+4*i}:{65+4*i}]\ns_memrealtime s[{66+4*i}:{67+4*i}]\ns_waitcnt lgkmcnt(0)")
def stamp_out(e, kidx, n, vt, vlane):
    if not PROFILE:
        return
    e("s_waitcnt vmcnt(0)")
    stamp(e, n - 1)
    e(f"""s_mov_b64 exec, 1
    s_mov_b32 s10, 0x3000000
    s_lshl_b32 s3, s2, 2
    s_add_u32 s3, s3, s21
    s_lshl_b32 s3, s3, 6
    s_add_u32 s3, s3, {PROF + kidx * 65536}
    v_mov_b32 v{vt}, 0""")
    for i in range(n):
        e(f"v_mov_b32 v{vt+2}, s{64+4*i}\nv_mov_b32 v{vt+3}, s{66+4*i}\nbuffer_store_dwordx2 v[{vt+2}:{vt+3}], v{vt}, s[8:11], s3 offen offset:{8*i}\ns_nop 1")

def srd(e, d, lo, hi, nbytes):
    e(f"s_mov_b32 s{d}, s{lo}\ns_mov_b32 s{d+1}, s{hi}\ns_mov_b32 s{d+2}, {hex(nbytes)}\ns_mov_b32 s{d+3}, 0x00020000")

def spread(mf, fill, frac=1.0, start=0):
    n = len(mf)
    last = max(start + 1, int(n * frac))
    out = []
    j = 0
    k = len(fill)
    for i, m in enumerate(mf):
        out.append(m)
        if i >= start:
            tgt = k if i >= last - 1 else ((i - start + 1) * k + (last - start) - 1) // (last - start)
            while j < min(tgt, k):
                out.append(fill[j]); j += 1
    while j < k:
        out.append(fill[j]); j += 1
    return out

def merge(a, b):
    out = []; ia = ib = 0
    while ia < len(a) or ib < len(b):
        if ib >= len(b) or (ia < len(a) and ia * len(b) <= ib * len(a)):
            out.append(a[ia]); ia += 1
        else:
            out.append(b[ib]); ib += 1
    return out

class Gemm:
    def __init__(self, name, MT, NT, KS, NS, XD, ndma, acc0, NX=0, frac=0.8):
        self.name, self.MT, self.NT, self.KS, self.NS, self.XD = name, MT, NT, KS, NS, XD
        self.ndma, self.acc0, self.NX, self.frac = ndma, acc0, NX, frac
        self.NW = NT + NX
        self.na = 2 * self.NW * 4 + XD * MT * 4
        self.vq = []
        self.extra_tail = {}
        self.sloop = 20
    def acc(self, nt, mt): return self.acc0 + (nt * self.MT + mt) * 4
    def wreg(self, par, nt): return (par * self.NW + nt) * 4
    def xreg(self, slot, mt): return 2 * self.NW * 4 + (slot * self.MT + mt) * 4
    def wread(self, nt, dst, slot, kk): raise NotImplementedError
    def dma(self, i, slot): raise NotImplementedError
    def wadv(self): raise NotImplementedError
    def xload(self, dst, mt): raise NotImplementedError
    def xadv(self): raise NotImplementedError
    def swapped(self, nt): return False
    def need(self, tags):
        idx = max(i for i, t in enumerate(self.vq) if t in tags)
        return min(63, len(self.vq) - 1 - idx)
    def x_items(self, j):
        out = []
        for mt in range(self.MT):
            out.append((self.xload(self.xreg(j % self.XD, mt), mt), ("x", j)))
        out.append((self.xadv(), None))
        return out
    def dma_items(self, st, lo, hi):
        out = []
        for i in range(lo, hi):
            m0, ld = self.dma(i, st % self.NS)
            out.append((m0, None))
            out.append((ld, ("w", st)))
        if hi == self.ndma:
            out.append((self.wadv(), None))
        return out
    def reads(self, j):
        out = []
        for nt in range(self.NW):
            out += self.wread(nt, self.wreg(j & 1, nt), (j // 2) % self.NS, j & 1)
        return out
    def issue(self, items):
        lines = []
        for line, tag in items:
            lines.append(line)
            if tag is not None:
                self.vq.append(tag)
        return lines
    def prologue_loads(self, e, first=(), after0=()):
        half = (self.ndma + 1) // 2
        def plain(items):
            for line, tag in items:
                e(line)
                if "m0" in line.split(",")[0]:
                    e("s_nop 0")
                if tag is not None:
                    self.vq.append(tag)
        plain(first)
        nx = 0
        for st in range(self.NS):
            plain(self.dma_items(st, 0, self.ndma if st < self.NS - 1 else half))
            for j in (2 * st, 2 * st + 1):
                if j < self.XD - 1:
                    plain(self.x_items(j)); nx = j + 1
            if st == 0:
                plain(after0)
        for j in range(nx, self.XD - 1):
            plain(self.x_items(j))
    def zero_acc(self, e):
        for r in range(self.NW * self.MT * 4):
            e(f"v_mov_b32 v{self.acc0 + r}, 0")
    def first_reads(self, e, tags=()):
        e(f"s_waitcnt vmcnt({self.need({('w', 0)} | set(tags))})\ns_barrier")
        stamp(e, 1)
        e.ext(self.reads(0))
    def step(self, j):
        MT, NW, KS, NS, XD = self.MT, self.NW, self.KS, self.NS, self.XD
        half = (self.ndma + 1) // 2
        tags = {("x", j)}
        bar = (j & 1) and j + 1 < KS
        if bar:
            tags.add(("w", (j + 1) // 2))
        n = self.need(tags)
        head = [("wait", n)]
        if bar:
            head.append("s_barrier")
        mf = []
        for nt in range(NW):
            order = range(MT) if nt % 2 == 0 else range(MT - 1, -1, -1)
            for mt in order:
                w, x = ar(self.wreg(j & 1, nt), 4), ar(self.xreg(j % XD, mt), 4)
                a, b = (x, w) if self.swapped(nt) else (w, x)
                d = vr(self.acc(nt, mt), 4)
                mf.append(f"v_mfma_f32_16x16x32_bf16 {d}, {a}, {b}, {d}")
        rd = self.reads(j + 1) if j + 1 < KS else []
        vm = []
        if j & 1:
            st = (j - 1) // 2 + NS
            if st < KS // 2:
                vm += self.dma_items(st, 0, half)
        else:
            st = (j - 2) // 2 + NS
            if st < KS // 2:
                vm += self.dma_items(st, half, self.ndma)
        if j + XD - 1 < KS:
            vm += self.x_items(j + XD - 1)
        vm += self.extra_tail.get(j, [])
        vml = self.issue(vm)
        return head, mf, rd, vml
    def render(self, head, mf, rd, vml, n):
        out = []
        for h in head:
            out.append(f"s_waitcnt vmcnt({n}) lgkmcnt(0)" if isinstance(h, tuple) else h)
        body = self.schedule(mf, rd, vml)
        fixed = []
        for i, line in enumerate(body):
            if line.endswith(" lds") and fixed and "m0" in fixed[-1].split(",")[0]:
                fixed.append("s_nop 0")
            fixed.append(line)
        return out + fixed
    def schedule(self, mf, rd, vml):
        return spread(mf, merge(rd, vml), self.frac)
    def mainloop(self, e):
        KS = self.KS
        P = 2 * self.NS * self.XD // math.gcd(2 * self.NS, self.XD)
        steps = [self.step(j) for j in range(KS)]
        def same(a, b):
            return [h for h in a[0] if not isinstance(h, tuple)] == [h for h in b[0] if not isinstance(h, tuple)] and a[1:] == b[1:]
        nl = 1
        while (nl + 1) * P <= KS and all(same(steps[nl * P + i], steps[i]) for i in range(P)):
            nl += 1
        if nl > 1:
            e(f"s_mov_b32 s{self.sloop}, {nl}\n.p2align 6\n{self.name}_loop:")
            for i in range(P):
                n = min(steps[it * P + i][0][0][1] for it in range(nl))
                lines = self.render(*steps[i], n)
                if i == P - 1:
                    lines.insert(len(lines) - 2, f"s_sub_u32 s{self.sloop}, s{self.sloop}, 1")
                    lines.append(f"s_cmp_lg_u32 s{self.sloop}, 0")
                    lines.append(f"s_cbranch_scc1 {self.name}_loop")
                e.ext(lines)
            j0 = nl * P
        else:
            j0 = 0
        for j in range(j0, KS):
            e.ext(self.render(*steps[j], steps[j][0][0][1]))
        self.loop_info = (P, nl, j0)
        stamp(e, 2)

def wave_lane(e, vlane, swave, tmp):
    e(f"v_lshrrev_b32 v{tmp}, 6, v0\nv_and_b32 v{vlane}, 63, v0\ns_nop 0\nv_readfirstlane_b32 s{swave}, v{tmp}")

def k_prep(pf=64):
    e = E(); name = "prep_kernel"
    kernel_head(e, name, 256)
    e("s_load_dwordx2 s[4:5], s[0:1], 72\ns_load_dwordx2 s[6:7], s[0:1], 0\ns_load_dwordx2 s[22:23], s[0:1], 16\ns_load_dwordx2 s[34:35], s[0:1], 8")
    wave_lane(e, 1, 21, 2)
    e("s_waitcnt lgkmcnt(0)")
    srd(e, 8, 4, 5, WS_BYTES); srd(e, 12, 6, 7, 0x400000); srd(e, 16, 22, 23, 0x200000)
    e("""
    s_lshl_b32 s24, s2, 3
    s_lshl_b32 s25, s21, 1
    s_add_u32 s24, s24, s25
    v_and_b32 v2, 1, v1
    v_add_u32 v2, s24, v2
    v_lshrrev_b32 v3, 1, v1
    v_lshlrev_b32 v4, 11, v2
    v_lshl_add_u32 v4, v3, 4, v4
    """)
    for i in range(4):
        e(f"buffer_load_dwordx4 v[{16+4*i}:{19+4*i}], v4, s[12:15], 0 offen offset:{512*i}")
    e("""
    s_lshl_b32 s26, s2, 2
    s_add_u32 s26, s26, s21
    s_lshl_b32 s27, s26, 11
    v_lshlrev_b32 v5, 4, v1
    buffer_load_dwordx4 v[8:11], v5, s[16:19], s27 offen
    buffer_load_dwordx4 v[12:15], v5, s[16:19], s27 offen offset:1024
    """)
    npf = 0
    if pf:
        srd(e, 36, 34, 35, 0x600000)
        npf = -(-0x600000 // (65536 * pf))
        e(f"s_lshl_b32 s28, s2, 8\nv_add_u32 v67, s28, v0\nv_mul_u32_u24 v67, {pf}, v67")
        for i in range(npf):
            e(f"s_mov_b32 s28, {i * 65536 * pf}\nbuffer_load_dword v{68+i}, v67, s[36:39], s28 offen")
    e(f"s_waitcnt vmcnt({2 + npf})")
    for r in range(16):
        e(f"v_lshlrev_b32 v{32+2*r}, 16, v{16+r}\nv_and_b32 v{33+2*r}, 0xffff0000, v{16+r}")
    e("v_add_f32 v6, v32, v33")
    for r in range(2, 32):
        e(f"v_add_f32 v6, v6, v{32+r}")
    def red_same_parity(v, t):
        e(f"""
        s_nop 1
        v_add_f32_dpp v{v}, v{v}, v{v} quad_perm:[2,3,0,1] row_mask:0xf bank_mask:0xf
        s_nop 1
        v_add_f32_dpp v{v}, v{v}, v{v} row_ror:4 row_mask:0xf bank_mask:0xf
        s_nop 1
        v_add_f32_dpp v{v}, v{v}, v{v} row_ror:8 row_mask:0xf bank_mask:0xf
        v_mov_b32 v{t}, v{v}
        s_nop 1
        v_permlane16_swap_b32 v{v}, v{t}
        v_add_f32 v{v}, v{v}, v{t}
        v_mov_b32 v{t}, v{v}
        s_nop 1
        v_permlane32_swap_b32 v{v}, v{t}
        v_add_f32 v{v}, v{v}, v{t}
        """)
    red_same_parity(6, 7)
    e(f"v_mul_f32 v6, {hex(f2u(1/1024))}, v6")
    for r in range(32):
        e(f"v_sub_f32 v{32+r}, v{32+r}, v6")
    e("v_mul_f32 v64, v32, v32")
    for r in range(1, 32):
        e(f"v_fmac_f32 v64, v{32+r}, v{32+r}")
    red_same_parity(64, 7)
    e(f"""
    v_mov_b32 v7, {hex(f2u(1e-5))}
    v_fmac_f32 v7, {hex(f2u(1/1024))}, v64
    v_rsq_f32 v7, v7
    s_nop 0
    """)
    for r in range(32):
        e(f"v_mul_f32 v{32+r}, v{32+r}, v7")
    for r in range(16):
        e(f"v_cvt_pk_bf16_f32 v{16+r}, v{32+2*r}, v{33+2*r}")
    e(f"""
    v_lshrrev_b32 v65, 6, v2
    v_lshlrev_b32 v65, 17, v65
    v_bfe_u32 v66, v2, 4, 2
    v_lshl_add_u32 v65, v66, 10, v65
    v_and_b32 v66, 15, v2
    v_lshl_add_u32 v65, v66, 4, v65
    v_lshrrev_b32 v66, 2, v3
    v_lshl_add_u32 v65, v66, 12, v65
    v_and_b32 v66, 3, v3
    v_lshl_add_u32 v65, v66, 8, v65
    """)
    for i in range(4):
        e(f"s_mov_b32 s28, {XN + i*32768}\nbuffer_store_dwordx4 v[{16+4*i}:{19+4*i}], v65, s[8:11], s28 offen")
    e(f"""
    v_lshlrev_b32 v66, 2, v2
    s_mov_b32 s28, {MUX}
    v_cmp_gt_u32 vcc, 2, v1
    s_and_saveexec_b64 s[30:31], vcc
    buffer_store_dword v6, v66, s[8:11], s28 offen
    s_mov_b64 exec, s[30:31]
    s_waitcnt vmcnt({5 + npf})
    """)
    e("v_mov_b32 v6, 0")
    for r in range(8):
        e(f"v_lshlrev_b32 v32, 16, v{8+r}\nv_and_b32 v33, 0xffff0000, v{8+r}\nv_add_f32 v6, v6, v32\nv_add_f32 v6, v6, v33")
    e("s_nop 1\nv_add_f32_dpp v6, v6, v6 quad_perm:[1,0,3,2] row_mask:0xf bank_mask:0xf")
    red_same_parity(6, 7)
    e(f"""
    v_mul_f32 v6, {hex(f2u(1/1024))}, v6
    v_cvt_pk_bf16_f32 v7, v6, v6
    v_and_b32 v32, 0xffff0000, v7
    v_sub_f32 v32, v6, v32
    v_cvt_pk_bf16_f32 v32, v32, v32
    s_lshr_b32 s28, s26, 5
    s_lshl_b32 s28, s28, 7
    s_bfe_u32 s29, s26, 0x10004
    s_lshl_b32 s29, s29, 5
    s_add_u32 s28, s28, s29
    s_bfe_u32 s29, s26, 0x10002
    s_lshl_b32 s29, s29, 4
    s_add_u32 s28, s28, s29
    s_bfe_u32 s29, s26, 0x10003
    s_lshl_b32 s29, s29, 3
    s_add_u32 s28, s28, s29
    s_and_b32 s29, s26, 3
    s_lshl_b32 s29, s29, 1
    s_add_u32 s28, s28, s29
    s_add_u32 s28, s28, {WB}
    v_mov_b32 v33, 0
    v_cmp_gt_u32 vcc, 1, v1
    s_and_saveexec_b64 s[30:31], vcc
    buffer_store_short v7, v33, s[8:11], s28 offen
    buffer_store_short v32, v33, s[8:11], s28 offen offset:64
    s_mov_b64 exec, s[30:31]
    """)
    stamp(e, 1); stamp(e, 2); stamp_out(e, 0, 4, 8, 1)
    kernel_tail(e, name)
    return name, e.text(), descriptor(name, 72, 0), (256, 256, 0)

def k_qkv(NS=4, XD=8):
    e = E(); name = "qkv_kernel"
    g = Gemm("qkv", MT=4, NT=6, KS=32, NS=NS, XD=XD, ndma=3, acc0=0)
    VL, VX, VD, VRE, VRO, VT = 100, 101, 102, 105, 106, 108
    SX, SW, SM = 24, 25, 26
    STG = 12288
    kernel_head(e, name, 256)
    e("s_load_dwordx2 s[4:5], s[0:1], 72\ns_load_dwordx2 s[6:7], s[0:1], 8")
    wave_lane(e, VL, 21, VT)
    e("""
    s_and_b32 s22, s2, 1
    s_lshl_b32 s22, s22, 2
    s_bfe_u32 s23, s2, 0x20003
    s_add_u32 s22, s22, s23
    s_bfe_u32 s23, s2, 0x20001
    s_lshl_b32 s23, s23, 3
    s_lshr_b32 s27, s2, 5
    s_add_u32 s23, s23, s27
    """)
    e(f"""
    s_lshl_b32 s27, s22, 2
    s_add_u32 s27, s27, s21
    s_lshl_b32 s{SX}, s27, 17
    s_add_u32 s{SX}, s{SX}, {XN}
    v_lshlrev_b32 v{VX}, 4, v{VL}
    s_mul_i32 s{SM}, s21, 3072
    s_mul_i32 s28, s21, 192
    s_lshl_b32 s{SW}, s23, 6
    """)
    for i in range(3):
        t = VT
        e(f"""
        v_add_u32 v{t}, s28, v{VL}
        v_add_u32 v{t}, {64*i}, v{t}
        v_mul_u32_u24 v{t+1}, 5462, v{t}
        v_lshrrev_b32 v{t+1}, 16, v{t+1}
        v_mul_u32_u24 v{t+2}, 12, v{t+1}
        v_sub_u32 v{t+2}, v{t}, v{t+2}
        v_bfe_u32 v{t+3}, v{t+1}, 2, 1
        v_bfe_u32 v{t+4}, v{t+1}, 3, 1
        v_and_b32 v{t+5}, 0x33, v{t+1}
        v_lshl_add_u32 v{t+5}, v{t+3}, 3, v{t+5}
        v_lshl_add_u32 v{t+5}, v{t+4}, 2, v{t+5}
        v_mul_u32_u24 v{VD+i}, 6144, v{t+5}
        v_lshlrev_b32 v{t+3}, 1, v{t+3}
        v_xor_b32 v{t+2}, v{t+2}, v{t+3}
        v_lshrrev_b32 v{t+4}, 2, v{t+2}
        v_lshl_add_u32 v{VD+i}, v{t+4}, 11, v{VD+i}
        v_and_b32 v{t+4}, 3, v{t+2}
        v_lshl_add_u32 v{VD+i}, v{t+4}, 4, v{VD+i}
        """)
    t = VT
    e(f"""
    v_bfe_u32 v{t}, v{VL}, 2, 3
    v_lshrrev_b32 v{t+1}, 5, v{VL}
    v_lshl_add_u32 v{t}, v{t+1}, 4, v{t}
    v_mul_u32_u24 v{t}, 192, v{t}
    v_and_b32 v{t+1}, 3, v{VL}
    v_lshl_add_u32 v{t}, v{t+1}, 3, v{t}
    v_bfe_u32 v{t+1}, v{VL}, 4, 1
    v_lshlrev_b32 v{t+1}, 5, v{t+1}
    v_add_u32 v{VRE}, v{t}, v{t+1}
    v_sub_u32 v{VRO}, v{t}, v{t+1}
    v_add_u32 v{VRO}, 32, v{VRO}
    s_waitcnt lgkmcnt(0)
    """)
    srd(e, 8, 4, 5, WS_BYTES); srd(e, 12, 6, 7, 0x600000)
    def wread(nt, dst, slot, kk):
        v = VRE if nt % 2 == 0 else VRO
        off = slot * STG + kk * 6144 + (nt & ~1) * 32
        return [f"ds_read_b64_tr_b16 {ar(dst,2)}, v{v} offset:{off}",
                f"ds_read_b64_tr_b16 {ar(dst+2,2)}, v{v} offset:{off + 8*192}"]
    g.wread = wread
    g.dma = lambda i, slot: (f"s_add_u32 m0, s{SM}, {slot*STG + i*1024}", f"buffer_load_dwordx4 v{VD+i}, s[12:15], s{SW} offen lds")
    g.wadv = lambda: f"s_add_u32 s{SW}, s{SW}, {64*6144}"
    g.xload = lambda dst, mt: f"buffer_load_dwordx4 {ar(dst,4)}, v{VX}, s[8:11], s{SX} offen offset:{mt*1024}"
    g.xadv = lambda: f"s_add_u32 s{SX}, s{SX}, 4096"
    g.swapped = lambda nt: nt >= 4
    g.prologue_loads(e)
    g.zero_acc(e)
    g.first_reads(e)
    g.mainloop(e)
    t = VT
    c = f2u(math.log2(math.e) / math.sqrt(32))
    e(f"""
    v_lshrrev_b32 v{t}, 4, v{VL}
    v_lshlrev_b32 v{t}, 9, v{t}
    v_and_b32 v{t+1}, 15, v{VL}
    v_lshl_add_u32 v{t+2}, v{t+1}, 4, v{t}
    v_and_b32 v{t+3}, 7, v{VL}
    v_lshl_add_u32 v{t+3}, v{t+3}, 4, v{t}
    v_bfe_u32 v{t+4}, v{VL}, 3, 1
    v_lshl_add_u32 v{t+3}, v{t+4}, 8, v{t+3}
    s_lshl_b32 s27, s23, 6
    s_lshl_b32 s28, s22, 3
    s_add_u32 s27, s27, s28
    s_lshl_b32 s28, s21, 1
    s_add_u32 s27, s27, s28
    s_lshl_b32 s28, s27, 11
    s_add_u32 s28, s28, {QF}
    s_lshl_b32 s29, s27, 12
    s_add_u32 s29, s29, {KV}
    s_add_u32 s30, s29, 4096
    s_mov_b32 s32, {hex(c)}
    s_mov_b32 s33, {hex(c)}
    s_nop 4
    """)
    P = t + 8
    k = 0
    def pack(dst, a, b, scale=False):
        if scale:
            for r in (a, a + 2, b, b + 2):
                e(f"v_pk_mul_f32 {vr(r,2)}, {vr(r,2)}, s[32:33]")
        e(f"""v_cvt_pk_bf16_f32 v{dst}, v{a}, v{a+1}
        v_cvt_pk_bf16_f32 v{dst+1}, v{a+2}, v{a+3}
        v_cvt_pk_bf16_f32 v{dst+2}, v{b}, v{b+1}
        v_cvt_pk_bf16_f32 v{dst+3}, v{b+2}, v{b+3}""")
    for mt in range(4):
        d = P + 4 * (k % 4); k += 1
        pack(d, g.acc(0, mt), g.acc(1, mt), True)
        e(f"buffer_store_dwordx4 {vr(d,4)}, v{t+2}, s[8:11], s28 offen offset:{(mt>>1)*2048 + (mt&1)*256}")
        d = P + 4 * (k % 4); k += 1
        pack(d, g.acc(2, mt), g.acc(3, mt))
        e(f"buffer_store_dwordx4 {vr(d,4)}, v{t+3}, s[8:11], s{29 + (mt>>1)} offen offset:{(mt&1)*128}")
    for T in range(2):
        for nt in (4, 5):
            d = P + 4 * (k % 4); k += 1
            pack(d, g.acc(nt, 2*T), g.acc(nt, 2*T + 1))
            e(f"buffer_store_dwordx4 {vr(d,4)}, v{t+2}, s[8:11], s{29 + T} offen offset:{2048 + (nt-4)*256}")
    stamp_out(e, 1, 4, 0, VL)
    kernel_tail(e, name)
    return name, e.text(), descriptor(name, P + 16, g.na), (256, 256, NS * STG)

def k_attn(pf=64):
    e = E(); name = "attn_kernel"
    S = [0, 16]; O = [32, 48]; NM = [64, 80]; Pp = [96, 104]; L = [112, 116]; Q = [120, 128]
    KF = [136, 144]; VF = [152, 160]; ONE = 168
    VL, VA, VG, T = 172, 173, 174, 176
    SK, SM, SL = 24, 25, 26
    kernel_head(e, name, 256)
    e("s_load_dwordx2 s[4:5], s[0:1], 72\ns_load_dwordx2 s[36:37], s[0:1], 16\ns_load_dwordx4 s[40:43], s[0:1], 32\ns_load_dwordx2 s[38:39], s[0:1], 48")
    wave_lane(e, VL, 21, T)
    e(f"""
    s_and_b32 s23, s2, 7
    s_lshl_b32 s23, s23, 2
    s_lshr_b32 s27, s2, 6
    s_add_u32 s23, s23, s27
    s_bfe_u32 s22, s2, 0x30003
    v_lshlrev_b32 v{VG}, 4, v{VL}
    v_mov_b32 v{VA}, v{VG}
    s_lshl_b32 s27, s23, 18
    s_add_u32 s34, s27, {KV}
    s_lshl_b32 s{SM}, s21, 12
    s_add_u32 s{SK}, s34, s{SM}
    s_lshl_b32 s27, s23, 6
    s_lshl_b32 s28, s22, 3
    s_add_u32 s27, s27, s28
    s_lshl_b32 s28, s21, 1
    s_add_u32 s27, s27, s28
    s_lshl_b32 s28, s27, 11
    s_add_u32 s28, s28, {QF}
    s_waitcnt lgkmcnt(0)
    """)
    srd(e, 8, 4, 5, WS_BYTES)
    VP = T + 8
    if pf:
        e(f"""s_cmp_eq_u32 s21, 1
        s_cselect_b32 s40, s42, s40
        s_cselect_b32 s41, s43, s41
        s_cmp_eq_u32 s21, 2
        s_cselect_b32 s40, s38, s40
        s_cselect_b32 s41, s39, s41
        s_mov_b32 s14, {1024*7168}
        s_cmp_eq_u32 s21, 3
        s_cselect_b32 s12, s36, s40
        s_cselect_b32 s13, s37, s41
        s_cselect_b32 s14, 0x200000, s14
        s_mov_b32 s15, 0x00020000
        s_lshl_b32 s30, s2, 6
        v_add_u32 v{VP}, s30, v{VL}
        v_mul_u32_u24 v{VP}, {pf}, v{VP}
        """)
    pfl = [f"buffer_load_dword v{VP+1}, v{VP}, s[12:15], 0 offen", f"v_add_u32 v{VP}, {16384*pf}, v{VP}"] if pf else []
    def dma_stage(soff):
        return [f"buffer_load_dwordx4 v{VG}, s[8:11], s{soff} offen offset:{i*1024} lds" for i in range(4)]
    e(f"s_mov_b32 m0, s{SM}\ns_nop 0")
    e.ext(dma_stage(SK))
    for x in range(2):
        for s in range(2):
            e(f"buffer_load_dwordx4 {vr(Q[x]+4*s,4)}, v{VG}, s[8:11], s28 offen offset:{x*2048 + s*1024}")
    for st in range(1, 3):
        e(f"s_add_u32 s{SK}, s{SK}, 16384\ns_add_u32 m0, s{SM}, {st*16384}\ns_nop 0")
        e.ext(dma_stage(SK))
        if st == 1:
            e.ext(pfl)
    e(f"""
    v_and_b32 v{T}, 3, v{VL}
    v_bfe_u32 v{T+1}, v{VL}, 2, 1
    v_bfe_u32 v{T+2}, v{VL}, 4, 1
    v_xor_b32 v{T+1}, v{T+1}, v{T+2}
    v_or_b32 v{T}, v{T}, v{T+1}
    v_mov_b32 v{T+1}, 0x3f803f80
    v_cmp_eq_u32 vcc, 0, v{T}
    s_nop 1
    v_cndmask_b32 v{ONE}, 0, v{T+1}, vcc
    v_mov_b32 v{ONE+1}, v{ONE}
    v_mov_b32 v{ONE+2}, v{ONE}
    v_mov_b32 v{ONE+3}, v{ONE}
    """)
    def zero_state():
        for x in range(2):
            for r in range(16): e(f"v_mov_b32 v{O[x]+r}, 0")
            for r in range(4): e(f"v_mov_b32 v{L[x]+r}, 0")
    zero_state()
    for r in range(8):
        e(f"v_mov_b32 v{Pp[1]+r}, 0\nv_mov_b32 v{VF[1]+r}, 0")
    def qk(x, kf, c):
        return [f"v_mfma_f32_32x32x16_bf16 {vr(S[x],16)}, {vr(kf,4)}, {vr(Q[x],4)}, {c}",
                f"v_mfma_f32_32x32x16_bf16 {vr(S[x],16)}, {vr(kf+4,4)}, {vr(Q[x]+4,4)}, {vr(S[x],16)}"]
    def pv(x, vf):
        return [f"v_mfma_f32_32x32x16_bf16 {vr(O[x],16)}, {vr(vf,4)}, {vr(Pp[x],4)}, {vr(O[x],16)}",
                f"v_mfma_f32_32x32x16_bf16 {vr(O[x],16)}, {vr(vf+4,4)}, {vr(Pp[x]+4,4)}, {vr(O[x],16)}",
                f"v_mfma_f32_16x16x32_bf16 {vr(L[x],4)}, {vr(ONE,4)}, {vr(Pp[x],4)}, {vr(L[x],4)}",
                f"v_mfma_f32_16x16x32_bf16 {vr(L[x],4)}, {vr(ONE,4)}, {vr(Pp[x]+4,4)}, {vr(L[x],4)}"]
    def tile_max(x, m, init):
        if init:
            e(f"v_max3_f32 v{m}, v{S[x]}, v{S[x]+1}, v{S[x]+2}\nv_max_f32 v{m}, v{m}, v{S[x]+3}")
        else:
            e(f"v_max3_f32 v{m}, v{S[x]}, v{S[x]+1}, v{m}\nv_max3_f32 v{m}, v{S[x]+2}, v{S[x]+3}, v{m}")
        for r in range(4, 16, 2):
            e(f"v_max3_f32 v{m}, v{S[x]+r}, v{S[x]+r+1}, v{m}")
    def set_negmax(x, m):
        e(f"""v_mov_b32 v{T+4}, v{m}
        s_nop 1
        v_permlane32_swap_b32 v{m}, v{T+4}
        v_max_f32 v{m}, v{m}, v{T+4}""")
        for r in range(16):
            e(f"v_sub_f32 v{NM[x]+r}, 0, v{m}")
    e(f"s_waitcnt vmcnt({9 if pf else 8})\ns_barrier")
    stamp(e, 1)
    e(f"ds_read_b128 {vr(KF[0],4)}, v{VA}\nds_read_b128 {vr(KF[0]+4,4)}, v{VA} offset:1024\ns_waitcnt lgkmcnt(0)")
    e.ext(qk(0, KF[0], "0")); e.ext(qk(1, KF[0], "0"))
    e("s_nop 15")
    tile_max(0, T, True); tile_max(1, T+1, True)
    set_negmax(0, T); set_negmax(1, T+1)
    e("s_nop 1")
    e.ext(qk(0, KF[0], vr(NM[0], 16)))
    e(f"s_mov_b32 s{SL}, 0\ns_nop 15")
    def phase(x, mf, extra):
        ex = [f"v_exp_f32 v{S[x]+r}, v{S[x]+r}" for r in range(16)]
        cv = [f"v_cvt_pk_bf16_f32 v{Pp[x]+r}, v{S[x]+2*r}, v{S[x]+2*r+1}" for r in range(8)]
        groups = [ex[0:3], ex[3:6], [ex[6], ex[7], cv[0], cv[1]], [ex[8], ex[9], cv[2], cv[3]], [ex[10]],
                  [ex[11], ex[12], ex[13], cv[4], ex[14], cv[5], ex[15], cv[6], None, cv[7]]]
        out = []
        for i in range(6):
            out.append(mf[i])
            out += extra[i]
            for ins in groups[i]:
                if ins is None:
                    out += extra[6]
                else:
                    out.append(ins)
        return out
    e(".p2align 6\nattn_loop:")
    for tt in range(4):
        kc, kn = KF[tt & 1], KF[(tt + 1) & 1]
        vc, vp = VF[tt & 1], VF[(tt + 1) & 1]
        rdv = [f"ds_read_b128 {vr(vc,4)}, v{VA} offset:{tt*4096 + 2048}", f"ds_read_b128 {vr(vc+4,4)}, v{VA} offset:{tt*4096 + 3072}"]
        ko = ((tt + 1) & 3) * 4096
        rdk = [f"ds_read_b128 {vr(kn,4)}, v{VA} offset:{ko}", f"ds_read_b128 {vr(kn+4,4)}, v{VA} offset:{ko + 1024}"]
        if tt == 3:
            extra = [[rdv[0]], [rdv[1], f"v_add_u32 v{VA}, 0x4000, v{VA}"], [f"v_and_b32 v{VA}, 0xffff, v{VA}", rdk[0]], [rdk[1]], [], [], []]
        else:
            extra = [[rdk[0]], [rdk[1]], [rdv[0]], [rdv[1]], [], [], []]
        e.ext(phase(0, qk(1, kc, vr(NM[1], 16)) + pv(1, vp), extra))
        e("s_waitcnt lgkmcnt(0)")
        extra = [[] for _ in range(7)]
        if tt == 0 and pf:
            extra[0] = pfl[:1]; extra[1] = pfl[1:]
        if tt == 2:
            extra = [[f"s_add_u32 s{SK}, s{SK}, 16384", f"s_add_u32 s29, s{SL}, 3"],
                     [f"s_cmp_lt_u32 s29, 16", f"s_cselect_b32 s27, s{SK}, {hex(WS_BYTES)}"],
                     ["s_and_b32 s29, s29, 3", "s_lshl_b32 s29, s29, 14"], [f"s_add_u32 m0, s29, s{SM}"], [], [],
                     [f"s_waitcnt vmcnt({6 if pf else 4})"]]
        if tt == 3:
            d = dma_stage(27)
            extra = [[d[0]], [d[1]], [d[2]], [d[3]], [f"s_add_u32 s{SL}, s{SL}, 1"], [], [f"s_cmp_lt_u32 s{SL}, 16"]]
        e.ext(phase(1, qk(0, kn, vr(NM[0], 16)) + pv(0, vc), extra))
        if tt == 2:
            e("s_barrier")
    e("s_cbranch_scc1 attn_loop")
    stamp(e, 2)
    e("s_nop 1")
    e.ext(pv(1, VF[1]))
    e(f"s_nop 15\nv_mov_b32 v{T}, 0")
    for x in range(2):
        for r in range(16):
            e(f"v_fma_f32 v{T}, v{O[x]+r}, 0, v{T}")
    e(f"""
    v_max_f32 v{T+1}, v{L[0]}, v{L[1]}
    v_add_f32 v{T+2}, v{L[0]}, v{L[1]}
    v_fma_f32 v{T}, v{T+2}, 0, v{T}
    v_add_f32 v{T}, v{T}, v{T+1}
    v_mov_b32 v{T+1}, {hex(f2u(2.0**100))}
    v_cmp_nlt_f32 vcc, v{T}, v{T+1}
    s_cbranch_vccnz attn_slow
    attn_out:
    """)
    e(f"""
    v_rcp_f32 v{T}, v{L[0]}
    v_rcp_f32 v{T+2}, v{L[1]}
    v_bfe_u32 v{T+4}, v{VL}, 4, 1
    v_lshlrev_b32 v{T+4}, 10, v{T+4}
    v_and_b32 v{T+5}, 15, v{VL}
    v_lshl_add_u32 v{T+4}, v{T+5}, 4, v{T+4}
    v_lshrrev_b32 v{T+5}, 5, v{VL}
    v_lshl_add_u32 v{T+4}, v{T+5}, 8, v{T+4}
    s_lshl_b32 s27, s22, 3
    s_lshl_b32 s28, s21, 1
    s_add_u32 s27, s27, s28
    s_lshl_b32 s27, s27, 16
    s_lshl_b32 s28, s23, 11
    s_add_u32 s27, s27, s28
    s_add_u32 s28, s27, {OF}
    s_add_u32 s29, s28, 65536
    """)
    for x in range(2):
        for r in range(0, 16, 2):
            e(f"v_pk_mul_f32 {vr(O[x]+r,2)}, {vr(O[x]+r,2)}, {vr(T+2*x,2)} op_sel_hi:[1,0]")
        for r in range(8):
            e(f"v_cvt_pk_bf16_f32 v{Pp[x]+r}, v{O[x]+2*r}, v{O[x]+2*r+1}")
        for ci in range(2):
            e(f"buffer_store_dwordx4 {vr(Pp[x]+4*ci,4)}, v{T+4}, s[8:11], s{28+x} offen offset:{ci*512}")
    stamp_out(e, 2, 4, 0, VL)
    e("s_endpgm")
    e("attn_slow:\ns_waitcnt vmcnt(0) lgkmcnt(0)")
    e(f"v_mov_b32 v{T}, 0xff800000\nv_mov_b32 v{T+1}, 0xff800000\ns_mov_b32 s27, s34\ns_mov_b32 s{SL}, 0")
    e("attn_slow_max:")
    e(f"""buffer_load_dwordx4 {vr(KF[0],4)}, v{VG}, s[8:11], s27 offen
    buffer_load_dwordx4 {vr(KF[0]+4,4)}, v{VG}, s[8:11], s27 offen offset:1024
    s_waitcnt vmcnt(0)""")
    e.ext(qk(0, KF[0], "0")); e.ext(qk(1, KF[0], "0"))
    e("s_nop 15")
    tile_max(0, T, False); tile_max(1, T+1, False)
    e(f"s_add_u32 s27, s27, 4096\ns_add_u32 s{SL}, s{SL}, 1\ns_cmp_lt_u32 s{SL}, 64\ns_cbranch_scc1 attn_slow_max")
    set_negmax(0, T); set_negmax(1, T+1)
    zero_state()
    e(f"s_mov_b32 s27, s34\ns_mov_b32 s{SL}, 0")
    e("attn_slow_acc:")
    for i, r in enumerate((KF[0], KF[0]+4, VF[0], VF[0]+4)):
        e(f"buffer_load_dwordx4 {vr(r,4)}, v{VG}, s[8:11], s27 offen offset:{i*1024}")
    e("s_waitcnt vmcnt(0)")
    e.ext(qk(0, KF[0], vr(NM[0], 16))); e.ext(qk(1, KF[0], vr(NM[1], 16)))
    e("s_nop 15")
    for x in range(2):
        for r in range(16): e(f"v_exp_f32 v{S[x]+r}, v{S[x]+r}")
        e("s_nop 0")
        for r in range(8): e(f"v_cvt_pk_bf16_f32 v{Pp[x]+r}, v{S[x]+2*r}, v{S[x]+2*r+1}")
    e("s_nop 1")
    e.ext(pv(0, VF[0])); e.ext(pv(1, VF[0]))
    e(f"s_nop 15\ns_add_u32 s27, s27, 4096\ns_add_u32 s{SL}, s{SL}, 1\ns_cmp_lt_u32 s{SL}, 64\ns_cbranch_scc1 attn_slow_acc")
    e("s_branch attn_out")
    kernel_tail(e, name)
    return name, e.text(), descriptor(name, T + 10, 0), (256, 256, 65536)

def setup_128x64(e, g, VL, VX, VD, VR, VT, SX, SW, SM, xbase, xblock, lds0=0):
    STG = 8192
    e("""
    s_bfe_u32 s22, s2, 0x20001
    s_lshl_b32 s22, s22, 2
    s_bfe_u32 s23, s2, 0x20003
    s_add_u32 s22, s22, s23
    s_and_b32 s23, s2, 1
    s_lshl_b32 s23, s23, 3
    s_lshr_b32 s27, s2, 5
    s_add_u32 s23, s23, s27
    """)
    t = VT
    e(f"""
    s_lshl_b32 s35, s22, 2
    s_add_u32 s35, s35, s21
    s_mul_i32 s{SX}, s35, {xblock}
    s_add_u32 s{SX}, s{SX}, {xbase}
    v_lshlrev_b32 v{VX}, 4, v{VL}
    s_lshl_b32 s{SM}, s21, 11
    s_lshl_b32 s{SW}, s23, 7
    s_lshl_b32 s28, s21, 4
    v_lshrrev_b32 v{t}, 3, v{VL}
    v_add_u32 v{t}, s28, v{t}
    v_bfe_u32 v{t+1}, v{t}, 1, 2
    v_bfe_u32 v{t+2}, v{VL}, 1, 2
    v_xor_b32 v{t+1}, v{t+1}, v{t+2}
    v_lshlrev_b32 v{t+1}, 5, v{t+1}
    v_and_b32 v{t+2}, 1, v{VL}
    v_lshl_add_u32 v{t+1}, v{t+2}, 4, v{t+1}
    v_lshl_add_u32 v{VD}, v{t}, 11, v{t+1}
    v_add_u32 v{VD+1}, {8*2048}, v{VD}
    v_bfe_u32 v{t}, v{VL}, 2, 3
    v_lshrrev_b32 v{t+1}, 1, v{t}
    v_lshrrev_b32 v{t+2}, 5, v{VL}
    v_lshl_add_u32 v{t}, v{t+2}, 4, v{t}
    v_lshlrev_b32 v{t}, 7, v{t}
    v_and_b32 v{t+2}, 3, v{VL}
    v_lshl_add_u32 v{t}, v{t+2}, 3, v{t}
    """)
    for nt in range(4):
        e(f"v_xor_b32 v{t+2}, {nt}, v{t+1}\nv_lshl_add_u32 v{VR+nt}, v{t+2}, 5, v{t}")
    def wread(nt, dst, slot, kk):
        off = lds0 + slot * STG + kk * 4096
        return [f"ds_read_b64_tr_b16 {ar(dst,2)}, v{VR+nt} offset:{off}",
                f"ds_read_b64_tr_b16 {ar(dst+2,2)}, v{VR+nt} offset:{off + 1024}"]
    g.wread = wread
    g.dma = lambda i, slot: (f"s_add_u32 m0, s{SM}, {lds0 + slot*STG + i*1024}", f"buffer_load_dwordx4 v{VD+i}, s[12:15], s{SW} offen lds")
    g.wadv = lambda: f"s_add_u32 s{SW}, s{SW}, {64*2048}"
    g.xload = lambda dst, mt: f"buffer_load_dwordx4 {ar(dst,4)}, v{VX}, s[8:11], s{SX} offen offset:{mt*1024}"
    g.xadv = lambda: f"s_add_u32 s{SX}, s{SX}, 2048"

def red_groups(e, v, t):
    e(f"""v_mov_b32 v{t}, v{v}
    s_nop 1
    v_permlane16_swap_b32 v{v}, v{t}
    v_add_f32 v{v}, v{v}, v{t}
    v_mov_b32 v{t}, v{v}
    s_nop 1
    v_permlane32_swap_b32 v{v}, v{t}
    v_add_f32 v{v}, v{v}, v{t}""")

def k_oproj(NS=4, XD=8):
    e = E(); name = "oproj_kernel"
    g = Gemm("oproj", MT=2, NT=4, KS=32, NS=NS, XD=XD, ndma=2, acc0=0, NX=1, frac=0.7)
    VL, VX, VD, VR, VB, VXD, VMU, VT = 40, 41, 42, 44, 48, 49, 50, 52
    SX, SW, SM = 24, 25, 26
    LWB = NS * 8192; LX = LWB + 4096
    kernel_head(e, name, 256)
    e("s_load_dwordx2 s[4:5], s[0:1], 72\ns_load_dwordx2 s[6:7], s[0:1], 16\ns_load_dwordx2 s[36:37], s[0:1], 0")
    wave_lane(e, VL, 21, VT)
    setup_128x64(e, g, VL, VX, VD, VR, VT, SX, SW, SM, OF, 65536)
    base_read = g.wread
    def wread(nt, dst, slot, kk):
        if nt < 4:
            return base_read(nt, dst, slot, kk)
        return [f"ds_read_b128 {ar(dst,4)}, v{VB}", f"v_add_u32 v{VB}, 128, v{VB}"]
    g.wread = wread
    t = VT
    e(f"""
    v_and_b32 v{t}, 1, v{VL}
    v_lshlrev_b32 v{t}, 6, v{t}
    v_lshrrev_b32 v{t+1}, 4, v{VL}
    v_lshl_add_u32 v{t}, v{t+1}, 4, v{t}
    v_add_u32 v{VB}, {LWB}, v{t}
    v_lshrrev_b32 v{t}, 3, v{VL}
    v_lshrrev_b32 v{t+1}, 4, v{VL}
    v_and_b32 v{t+2}, 7, v{VL}
    v_xor_b32 v{t+1}, v{t+1}, v{t+2}
    v_lshlrev_b32 v{t+1}, 4, v{t+1}
    v_lshl_add_u32 v{VXD}, v{t}, 11, v{t+1}
    v_and_b32 v{t}, 15, v{VL}
    v_lshlrev_b32 v{t+8}, 2, v{t}
    s_lshl_b32 s29, s21, 10
    s_add_u32 s30, s29, {WB}
    s_lshl_b32 s31, s35, 16
    s_lshl_b32 s28, s23, 7
    s_add_u32 s31, s31, s28
    s_lshl_b32 s32, s21, 12
    s_lshl_b32 s33, s35, 7
    s_add_u32 s34, s33, {MUX}
    s_waitcnt lgkmcnt(0)
    """)
    srd(e, 8, 4, 5, WS_BYTES); srd(e, 12, 6, 7, 0x200000); srd(e, 16, 36, 37, 0x400000)
    first = [(f"s_add_u32 m0, s29, {LWB}", None), (f"buffer_load_dwordx4 v{VX}, s[8:11], s30 offen lds", ("wb", 0))]
    tail = []
    for i in range(4):
        if i:
            tail.append((f"v_xor_b32 v{VXD}, 64, v{VXD}", None))
            tail.append((f"s_add_u32 s31, s31, {8*2048}", None))
        tail.append((f"s_add_u32 m0, s32, {LX + i*1024}", None))
        tail.append((f"buffer_load_dwordx4 v{VXD}, s[16:19], s31 offen lds", ("xt", 0)))
    g.extra_tail[26] = tail[:6]
    g.extra_tail[27] = tail[6:]
    g.extra_tail[28] = [(f"buffer_load_dword v{VMU+mt}, v{t+8}, s[8:11], s34 offen offset:{mt*64}", ("mu", 0)) for mt in range(2)]
    g.prologue_loads(e, first=first)
    g.zero_acc(e)
    g.first_reads(e, tags=[("wb", 0)])
    g.mainloop(e)
    XR = t + 10
    e(f"""
    v_and_b32 v{t}, 15, v{VL}
    v_lshrrev_b32 v{t+1}, 1, v{t}
    v_lshrrev_b32 v{t+2}, 5, v{VL}
    v_xor_b32 v{t+1}, v{t+1}, v{t+2}
    v_lshlrev_b32 v{t}, 7, v{t}
    v_bfe_u32 v{t+2}, v{VL}, 4, 1
    v_lshl_add_u32 v{t}, v{t+2}, 3, v{t}
    v_add_u32 v{t}, s32, v{t}
    s_waitcnt vmcnt(0)
    """)
    for nt in range(4):
        e(f"v_xor_b32 v{t+2}, {2*nt}, v{t+1}\nv_lshl_add_u32 v{t+2}, v{t+2}, 4, v{t}")
        for mt in range(2):
            e(f"ds_read_b64 {vr(XR + (nt*2+mt)*2, 2)}, v{t+2} offset:{LX + mt*2048}")
    e("s_nop 4")
    for mt in range(2):
        a = g.acc(4, mt)
        e(f"v_add_f32 v{a}, v{a}, v{a+1}\nv_add_f32 v{VMU+mt}, v{VMU+mt}, v{a}")
    e(f"""
    s_lshr_b32 s27, s35, 1
    s_lshl_b32 s27, s27, 17
    s_and_b32 s28, s35, 1
    s_lshl_b32 s28, s28, 11
    s_add_u32 s27, s27, s28
    s_lshl_b32 s28, s23, 13
    s_add_u32 s27, s27, s28
    s_add_u32 s28, s27, {HC}
    s_add_u32 s29, s28, 4096
    s_waitcnt lgkmcnt(0)
    """)
    PK = XR + 16
    SS = t + 4
    for mt in range(2):
        for nt in range(4):
            a = g.acc(nt, mt); xr = XR + (nt*2+mt)*2
            e(f"""v_lshlrev_b32 v{t}, 16, v{xr}
            v_and_b32 v{t+1}, 0xffff0000, v{xr}
            v_lshlrev_b32 v{t+2}, 16, v{xr+1}
            v_and_b32 v{t+3}, 0xffff0000, v{xr+1}""")
            for r in range(4):
                e(f"v_sub_f32 v{a+r}, v{a+r}, v{VMU+mt}")
            e(f"v_pk_add_f32 {vr(a,2)}, {vr(a,2)}, {vr(t,2)}\nv_pk_add_f32 {vr(a+2,2)}, {vr(a+2,2)}, {vr(t+2,2)}")
            for r in range(4):
                if nt == 0 and r == 0:
                    e(f"v_mul_f32 v{SS+mt}, v{a}, v{a}")
                else:
                    e(f"v_fmac_f32 v{SS+mt}, v{a+r}, v{a+r}")
            d = PK + (mt*2 + (nt >> 1)) * 4 + (nt & 1) * 2
            e(f"v_cvt_pk_bf16_f32 v{d}, v{a}, v{a+1}\nv_cvt_pk_bf16_f32 v{d+1}, v{a+2}, v{a+3}")
            if nt & 1:
                e(f"buffer_store_dwordx4 {vr(d-2,4)}, v{VX}, s[8:11], s{28 + (nt>>1)} offen offset:{mt*1024}")
    for mt in range(2):
        red_groups(e, SS + mt, t)
    e(f"""
    v_lshlrev_b32 v{t}, 4, v{t+8}
    s_lshl_b32 s27, s35, 11
    s_lshl_b32 s28, s23, 2
    s_add_u32 s27, s27, s28
    s_add_u32 s27, s27, {SSQ}
    s_add_u32 s28, s33, {MU2}
    v_cmp_gt_u32 vcc, 16, v{VL}
    s_and_saveexec_b64 s[38:39], vcc
    buffer_store_dword v{SS}, v{t}, s[8:11], s27 offen
    buffer_store_dword v{SS+1}, v{t}, s[8:11], s27 offen offset:1024
    s_cmp_lg_u32 s23, 0
    s_cbranch_scc1 oproj_done
    buffer_store_dword v{VMU}, v{t+8}, s[8:11], s28 offen
    buffer_store_dword v{VMU+1}, v{t+8}, s[8:11], s28 offen offset:64
    oproj_done:
    """)
    stamp_out(e, 3, 4, 0, VL)
    kernel_tail(e, name)
    return name, e.text(), descriptor(name, PK + 16, g.na), (256, 256, LX + 16384)

def k_gateup(NS=4, XD=4):
    e = E(); name = "gateup_kernel"
    g = Gemm("gateup", MT=4, NT=14, KS=32, NS=NS, XD=XD, ndma=7, acc0=0, frac=0.85)
    VL, VX, VD, VR, VT = 224, 225, 226, 233, 236
    SX, SW, SM = 24, 25, 26
    STG = 28672
    kernel_head(e, name, 256)
    e("s_load_dwordx2 s[4:5], s[0:1], 72\ns_load_dwordx4 s[36:39], s[0:1], 32")
    wave_lane(e, VL, 21, VT)
    e("""
    s_and_b32 s22, s2, 1
    s_lshl_b32 s22, s22, 2
    s_bfe_u32 s23, s2, 0x20003
    s_add_u32 s22, s22, s23
    s_bfe_u32 s23, s2, 0x20001
    s_lshl_b32 s23, s23, 3
    s_lshr_b32 s27, s2, 5
    s_add_u32 s23, s23, s27
    """)
    t = VT
    e(f"""
    s_lshl_b32 s35, s22, 2
    s_add_u32 s35, s35, s21
    s_lshl_b32 s{SX}, s35, 17
    s_add_u32 s{SX}, s{SX}, {HC}
    v_lshlrev_b32 v{VX}, 4, v{VL}
    s_mul_i32 s{SM}, s21, 7168
    s_and_b32 s28, s21, 1
    s_mul_i32 s28, s28, 448
    s_mul_i32 s{SW}, s23, 224
    """)
    for i in range(7):
        e(f"""
        v_add_u32 v{t}, s28, v{VL}
        v_add_u32 v{t}, {64*i}, v{t}
        v_mul_u32_u24 v{t+1}, 4682, v{t}
        v_lshrrev_b32 v{t+1}, 16, v{t+1}
        v_mul_u32_u24 v{t+2}, 14, v{t+1}
        v_sub_u32 v{t+2}, v{t}, v{t+2}
        v_mul_u32_u24 v{t+1}, 7168, v{t+1}
        v_lshl_add_u32 v{VD+i}, v{t+2}, 4, v{t+1}
        """)
    e(f"""
    v_lshrrev_b32 v{t}, 2, v{VL}
    v_mul_u32_u24 v{t}, 224, v{t}
    v_and_b32 v{t+1}, 3, v{VL}
    v_lshl_add_u32 v{VR}, v{t+1}, 3, v{t}
    v_add_u32 v{VR+1}, {2*STG}, v{VR}
    v_add_u32 v{VR+2}, {4*STG}, v{VR}
    s_waitcnt lgkmcnt(0)
    s_cmp_lt_u32 s21, 2
    s_cselect_b32 s6, s36, s38
    s_cselect_b32 s7, s37, s39
    """)
    srd(e, 8, 4, 5, WS_BYTES); srd(e, 12, 6, 7, 1024 * 7168)
    def wread(nt, dst, slot, kk):
        off = (slot & 1) * STG + (nt // 7) * 14336 + kk * 7168 + (nt % 7) * 32
        v = VR + (slot >> 1)
        return [f"ds_read_b64_tr_b16 {ar(dst,2)}, v{v} offset:{off}",
                f"ds_read_b64_tr_b16 {ar(dst+2,2)}, v{v} offset:{off + 3584}"]
    g.wread = wread
    g.dma = lambda i, slot: (f"s_add_u32 m0, s{SM}, {slot*STG + i*1024}", f"buffer_load_dwordx4 v{VD+i}, s[12:15], s{SW} offen lds")
    g.wadv = lambda: f"s_add_u32 s{SW}, s{SW}, {64*7168}"
    g.xload = lambda dst, mt: f"buffer_load_dwordx4 {ar(dst,4)}, v{VX}, s[8:11], s{SX} offen offset:{mt*1024}"
    g.xadv = lambda: f"s_add_u32 s{SX}, s{SX}, 4096"
    g.prologue_loads(e)
    g.zero_acc(e)
    g.first_reads(e)
    g.mainloop(e)
    e(f"""
    v_lshrrev_b32 v{t}, 5, v{VL}
    v_lshlrev_b32 v{t}, 10, v{t}
    v_and_b32 v{t+1}, 31, v{VL}
    v_lshl_add_u32 v{t}, v{t+1}, 4, v{t}
    v_add_u32 v{t+1}, 229376, v{t}
    s_mul_i32 s27, s35, {2*229376}
    s_add_u32 s27, s27, {ACT}
    s_mul_i32 s28, s23, 7
    """)
    k = 0
    for ft in range(7):
        e(f"""s_add_u32 s29, s28, {ft}
        s_lshr_b32 s30, s29, 1
        s_lshl_b32 s30, s30, 11
        s_and_b32 s29, s29, 1
        s_lshl_b32 s29, s29, 9
        s_add_u32 s30, s30, s29
        s_add_u32 s{40+ft}, s30, s27""")
    for ft in range(7):
        for a in range(2):
            d = t + 4 + 4 * (k % 4); k += 1
            for h in range(2):
                ga, ua = g.acc(ft, 2*a + h), g.acc(ft + 7, 2*a + h)
                e(f"""v_pk_mul_f32 {vr(ga,2)}, {vr(ga,2)}, {vr(ua,2)}
                v_pk_mul_f32 {vr(ga+2,2)}, {vr(ga+2,2)}, {vr(ua+2,2)}
                v_cvt_pk_bf16_f32 v{d+2*h}, v{ga}, v{ga+1}
                v_cvt_pk_bf16_f32 v{d+2*h+1}, v{ga+2}, v{ga+3}""")
            e(f"""s_nop 1
            v_permlane32_swap_b32 v{d}, v{d+2}
            v_permlane32_swap_b32 v{d+1}, v{d+3}
            buffer_store_dwordx4 {vr(d,4)}, v{t+a}, s[8:11], s{40+ft} offen""")
    stamp_out(e, 4, 4, 0, VL)
    kernel_tail(e, name)
    return name, e.text(), descriptor(name, 256, g.na), (256, 256, NS * STG)

def k_down(NS=4, XD=8):
    e = E(); name = "down_kernel"
    g = Gemm("down", MT=2, NT=4, KS=112, NS=NS, XD=XD, ndma=2, acc0=0, frac=0.7)
    VL, VX, VD, VR, VMU, VT = 32, 33, 34, 36, 40, 44
    HR, SQ = 56, 72
    SX, SW, SM = 24, 25, 26
    LO = NS * 8192
    kernel_head(e, name, 256)
    e("s_load_dwordx2 s[4:5], s[0:1], 72\ns_load_dwordx4 s[36:39], s[0:1], 48")
    wave_lane(e, VL, 21, VT)
    setup_128x64(e, g, VL, VX, VD, VR, VT, SX, SW, SM, ACT, 229376)
    t = VT
    e(f"""
    s_lshr_b32 s27, s35, 1
    s_lshl_b32 s27, s27, 17
    s_and_b32 s28, s35, 1
    s_lshl_b32 s28, s28, 11
    s_add_u32 s27, s27, s28
    s_lshl_b32 s28, s23, 13
    s_add_u32 s27, s27, s28
    s_add_u32 s30, s27, {HC}
    s_add_u32 s31, s30, 4096
    s_lshl_b32 s32, s35, 7
    s_add_u32 s32, s32, {MU2}
    s_lshl_b32 s33, s35, 11
    s_add_u32 s33, s33, {SSQ}
    v_and_b32 v{t}, 15, v{VL}
    v_lshlrev_b32 v{t+8}, 2, v{t}
    v_lshrrev_b32 v{t+1}, 4, v{VL}
    v_lshlrev_b32 v{t+1}, 4, v{t+1}
    v_lshl_add_u32 v{t+9}, v{t}, 6, v{t+1}
    s_waitcnt lgkmcnt(0)
    """)
    srd(e, 8, 4, 5, WS_BYTES); srd(e, 12, 36, 37, 3584 * 2048); srd(e, 16, 38, 39, 0x400000)
    g.extra_tail[106] = [(f"buffer_load_dwordx4 {vr(SQ + 4*mt,4)}, v{t+9}, s[8:11], s33 offen offset:{mt*1024}", ("r", 0)) for mt in range(2)] + \
                        [(f"buffer_load_dword v{VMU+mt}, v{t+8}, s[8:11], s32 offen offset:{mt*64}", ("r", 0)) for mt in range(2)]
    g.extra_tail[107] = [(f"buffer_load_dwordx4 {vr(HR + (mt*2+p)*4,4)}, v{VX}, s[8:11], s{30+p} offen offset:{mt*1024}", ("r", 0)) for mt in range(2) for p in range(2)]
    g.prologue_loads(e)
    g.zero_acc(e)
    g.first_reads(e)
    g.mainloop(e)
    e("s_waitcnt vmcnt(0)")
    for mt in range(2):
        q = SQ + 4 * mt
        e(f"v_add_f32 v{q}, v{q}, v{q+1}\nv_add_f32 v{q+2}, v{q+2}, v{q+3}\nv_add_f32 v{q}, v{q}, v{q+2}")
        red_groups(e, q, t)
        e(f"v_mov_b32 v{q+1}, {hex(f2u(1e-5))}\nv_fmac_f32 v{q+1}, {hex(f2u(1/1024))}, v{q}\nv_rcp_f32 v{q}, v{q+1}")
    e(f"""
    s_lshl_b32 s27, s21, 12
    s_add_u32 s27, s27, {LO}
    v_and_b32 v{t}, 15, v{VL}
    v_and_b32 v{t+1}, 7, v{VL}
    v_lshrrev_b32 v{t+2}, 5, v{VL}
    v_xor_b32 v{t+1}, v{t+1}, v{t+2}
    v_lshlrev_b32 v{t}, 7, v{t}
    v_bfe_u32 v{t+2}, v{VL}, 4, 1
    v_lshl_add_u32 v{t}, v{t+2}, 3, v{t}
    v_add_u32 v{t}, s27, v{t}
    """)
    for nt in range(4):
        e(f"v_xor_b32 v{t+2}, {2*nt}, v{t+1}\nv_lshl_add_u32 v{VR+nt}, v{t+2}, 4, v{t}")
    for mt in range(2):
        for nt in range(4):
            a = g.acc(nt, mt); hr = HR + (mt*2 + (nt >> 1)) * 4 + (nt & 1) * 2
            e(f"""v_lshlrev_b32 v{t}, 16, v{hr}
            v_and_b32 v{t+1}, 0xffff0000, v{hr}
            v_lshlrev_b32 v{t+2}, 16, v{hr+1}
            v_and_b32 v{t+3}, 0xffff0000, v{hr+1}""")
            for r in range(4):
                e(f"v_add_f32 v{t+r}, v{t+r}, v{VMU+mt}")
            for r in range(4):
                e(f"v_fmac_f32 v{t+r}, v{a+r}, v{SQ+4*mt}")
            e(f"""v_cvt_pk_bf16_f32 v{a}, v{t}, v{t+1}
            v_cvt_pk_bf16_f32 v{a+1}, v{t+2}, v{t+3}
            ds_write_b64 v{VR+nt}, {vr(a,2)} offset:{mt*2048}""")
    e(f"""
    v_lshrrev_b32 v{t}, 3, v{VL}
    v_and_b32 v{t+1}, 7, v{VL}
    v_xor_b32 v{t+2}, v{t+1}, v{t}
    v_lshlrev_b32 v{t+2}, 4, v{t+2}
    v_lshl_add_u32 v{t+2}, v{t}, 7, v{t+2}
    v_add_u32 v{t+2}, s27, v{t+2}
    v_lshlrev_b32 v{t+1}, 4, v{t+1}
    v_lshl_add_u32 v{t+1}, v{t}, 11, v{t+1}
    s_lshl_b32 s28, s35, 16
    s_lshl_b32 s29, s23, 7
    s_add_u32 s28, s28, s29
    s_waitcnt lgkmcnt(0)
    """)
    for i in range(4):
        e(f"ds_read_b128 {vr(HR+4*i,4)}, v{t+2} offset:{i*1024}")
    for i in range(4):
        e(f"s_waitcnt lgkmcnt({3-i})\nbuffer_store_dwordx4 {vr(HR+4*i,4)}, v{t+1}, s[16:19], s28 offen")
        if i < 3:
            e(f"s_add_u32 s28, s28, {8*2048}")
    stamp_out(e, 5, 4, 0, VL)
    kernel_tail(e, name)
    return name, e.text(), descriptor(name, 80, g.na), (256, 256, LO + 16384)

def build(kernels):
    head = []
    for name, _, _, (grid, block, lds) in kernels:
        head.append(f"; @launch kernel={name} grid=({grid},1,1) block=({block},1,1) lds={lds}")
    out = "\n".join(head) + "\n"
    out += "; generated by dev/gen.py (hand-written instruction templates, unrolled by script)\n"
    out += '.amdgcn_target "amdgcn-amd-amdhsa--gfx950"\n'
    seen = set()
    for name, text, _, _ in kernels:
        if name not in seen:
            out += text
            seen.add(name)
    seen = set()
    for name, _, desc, _ in kernels:
        if name not in seen:
            out += desc
            seen.add(name)
    return out

def default_kernels():
    return [k_prep(), k_qkv(), k_attn(), k_oproj(), k_gateup(), k_down()]

if __name__ == "__main__":
    path = sys.argv[1] if len(sys.argv) > 1 else f"cdna_kernels/{NAME}.s"
    open(path, "w").write(build(default_kernels()))
    print("wrote", path)
```

```python
import sys, math, struct

NAME = "sequential_preLN__softmax_full_mha__glu_gated_bilinear__prompt"

XN   = 0x0000000
QF   = 0x0400000
KV   = 0x0800000
OF   = 0x1000000
HC   = 0x1400000
ACT  = 0x1800000
MUX  = 0x2600000
MU2  = 0x2602000
WB   = 0x2604000
SSQ  = 0x2610000
WS_BYTES = 0x2640000
STAT = None

def f2u(x):
    return struct.unpack("<I", struct.pack("<f", x))[0]

class E:
    def __init__(self):
        self.l = []
    def __call__(self, s):
        for line in s.strip("\n").split("\n"):
            line = line.strip()
            if not line:
                continue
            if line.endswith(":") or line.startswith("."):
                self.l.append(line)
            else:
                self.l.append("    " + line)
    def ext(self, lines):
        for x in lines:
            self(x)
    def text(self):
        return "\n".join(self.l) + "\n"

def vr(b, n=1, f="v"):
    return f"{f}{b}" if n == 1 else f"{f}[{b}:{b+n-1}]"
def ar(b, n=1):
    return vr(b, n, "a")

def kernel_head(e, name, nwg):
    e(f".text\n.globl {name}\n.p2align 8\n.type {name},@function\n{name}:")
    e(f"s_cmp_ge_u32 s2, {nwg}\ns_cbranch_scc1 {name}_end")
    stamp(e, 0)

def kernel_tail(e, name):
    e(f"{name}_end:\ns_endpgm")

def descriptor(name, nv, na, ns=96):
    acc = max(4, (nv + 3) // 4 * 4)
    tot = acc + na if na else nv
    return f""".section .rodata,"a"
.p2align 6
.amdhsa_kernel {name}
  .amdhsa_next_free_vgpr {tot}
  .amdhsa_next_free_sgpr {ns}
  .amdhsa_accum_offset {acc}
  .amdhsa_group_segment_fixed_size 0
  .amdhsa_kernarg_size 80
  .amdhsa_user_sgpr_count 2
  .amdhsa_user_sgpr_kernarg_segment_ptr 1
  .amdhsa_system_sgpr_workgroup_id_x 1
  .amdhsa_float_denorm_mode_32 3
  .amdhsa_ieee_mode 0
.end_amdhsa_kernel
"""

PROF = 0x2800000
PROFILE = False
_kidx = [0]
def stamp(e, i):
    if PROFILE:
        e(f"s_memtime s[{64+4*i}:{65+4*i}]\ns_memrealtime s[{66+4*i}:{67+4*i}]\ns_waitcnt lgkmcnt(0)")
def stamp_out(e, kidx, n, vt, vlane):
    if not PROFILE:
        return
    e("s_waitcnt vmcnt(0)")
    stamp(e, n - 1)
    e(f"""s_mov_b64 exec, 1
    s_mov_b32 s10, 0x3000000
    s_lshl_b32 s3, s2, 2
    s_add_u32 s3, s3, s21
    s_lshl_b32 s3, s3, 6
    s_add_u32 s3, s3, {PROF + kidx * 65536}
    v_mov_b32 v{vt}, 0""")
    for i in range(n):
        e(f"v_mov_b32 v{vt+2}, s{64+4*i}\nv_mov_b32 v{vt+3}, s{66+4*i}\nbuffer_store_dwordx2 v[{vt+2}:{vt+3}], v{vt}, s[8:11], s3 offen offset:{8*i}\ns_nop 1")

def srd(e, d, lo, hi, nbytes):
    e(f"s_mov_b32 s{d}, s{lo}\ns_mov_b32 s{d+1}, s{hi}\ns_mov_b32 s{d+2}, {hex(nbytes)}\ns_mov_b32 s{d+3}, 0x00020000")

def spread(mf, fill, frac=1.0, start=0):
    n = len(mf)
    last = max(start + 1, int(n * frac))
    out = []
    j = 0
    k = len(fill)
    for i, m in enumerate(mf):
        out.append(m)
        if i >= start:
            tgt = k if i >= last - 1 else ((i - start + 1) * k + (last - start) - 1) // (last - start)
            while j < min(tgt, k):
                out.append(fill[j]); j += 1
    while j < k:
        out.append(fill[j]); j += 1
    return out

def merge(a, b):
    out = []; ia = ib = 0
    while ia < len(a) or ib < len(b):
        if ib >= len(b) or (ia < len(a) and ia * len(b) <= ib * len(a)):
            out.append(a[ia]); ia += 1
        else:
            out.append(b[ib]); ib += 1
    return out

class Gemm:
    def __init__(self, name, MT, NT, KS, NS, XD, ndma, acc0, NX=0, frac=0.8):
        self.name, self.MT, self.NT, self.KS, self.NS, self.XD = name, MT, NT, KS, NS, XD
        self.ndma, self.acc0, self.NX, self.frac = ndma, acc0, NX, frac
        self.NW = NT + NX
        self.na = 2 * self.NW * 4 + XD * MT * 4
        self.vq = []
        self.extra_tail = {}
        self.sloop = 20
    def acc(self, nt, mt): return self.acc0 + (nt * self.MT + mt) * 4
    def wreg(self, par, nt): return (par * self.NW + nt) * 4
    def xreg(self, slot, mt): return 2 * self.NW * 4 + (slot * self.MT + mt) * 4
    def wread(self, nt, dst, slot, kk): raise NotImplementedError
    def dma(self, i, slot): raise NotImplementedError
    def wadv(self): raise NotImplementedError
    def xload(self, dst, mt): raise NotImplementedError
    def xadv(self): raise NotImplementedError
    def swapped(self, nt): return False
    def need(self, tags):
        idx = max(i for i, t in enumerate(self.vq) if t in tags)
        return min(63, len(self.vq) - 1 - idx)
    def x_items(self, j):
        out = []
        for mt in range(self.MT):
            out.append((self.xload(self.xreg(j % self.XD, mt), mt), ("x", j)))
        out.append((self.xadv(), None))
        return out
    def dma_items(self, st, lo, hi):
        out = []
        for i in range(lo, hi):
            m0, ld = self.dma(i, st % self.NS)
            out.append((m0, None))
            out.append((ld, ("w", st)))
        if hi == self.ndma:
            out.append((self.wadv(), None))
        return out
    def reads(self, j):
        out = []
        for nt in range(self.NW):
            out += self.wread(nt, self.wreg(j & 1, nt), (j // 2) % self.NS, j & 1)
        return out
    def issue(self, items):
        lines = []
        for line, tag in items:
            lines.append(line)
            if tag is not None:
                self.vq.append(tag)
        return lines
    def prologue_loads(self, e, first=(), after0=()):
        half = (self.ndma + 1) // 2
        def plain(items):
            for line, tag in items:
                e(line)
                if "m0" in line.split(",")[0]:
                    e("s_nop 0")
                if tag is not None:
                    self.vq.append(tag)
        plain(first)
        nx = 0
        for st in range(self.NS):
            plain(self.dma_items(st, 0, self.ndma if st < self.NS - 1 else half))
            for j in (2 * st, 2 * st + 1):
                if j < self.XD - 1:
                    plain(self.x_items(j)); nx = j + 1
            if st == 0:
                plain(after0)
        for j in range(nx, self.XD - 1):
            plain(self.x_items(j))
    def zero_acc(self, e):
        for r in range(self.NW * self.MT * 4):
            e(f"v_mov_b32 v{self.acc0 + r}, 0")
    def first_reads(self, e, tags=()):
        e(f"s_waitcnt vmcnt({self.need({('w', 0)} | set(tags))})\ns_barrier")
        stamp(e, 1)
        e.ext(self.reads(0))
    def step(self, j):
        MT, NW, KS, NS, XD = self.MT, self.NW, self.KS, self.NS, self.XD
        half = (self.ndma + 1) // 2
        tags = {("x", j)}
        bar = (j & 1) and j + 1 < KS
        if bar:
            tags.add(("w", (j + 1) // 2))
        n = self.need(tags)
        head = [("wait", n)]
        if bar:
            head.append("s_barrier")
        mf = []
        for nt in range(NW):
            order = range(MT) if nt % 2 == 0 else range(MT - 1, -1, -1)
            for mt in order:
                w, x = ar(self.wreg(j & 1, nt), 4), ar(self.xreg(j % XD, mt), 4)
                a, b = (x, w) if self.swapped(nt) else (w, x)
                d = vr(self.acc(nt, mt), 4)
                mf.append(f"v_mfma_f32_16x16x32_bf16 {d}, {a}, {b}, {d}")
        rd = self.reads(j + 1) if j + 1 < KS else []
        vm = []
        if j & 1:
            st = (j - 1) // 2 + NS
            if st < KS // 2:
                vm += self.dma_items(st, 0, half)
        else:
            st = (j - 2) // 2 + NS
            if st < KS // 2:
                vm += self.dma_items(st, half, self.ndma)
        if j + XD - 1 < KS:
            vm += self.x_items(j + XD - 1)
        vm += self.extra_tail.get(j, [])
        vml = self.issue(vm)
        return head, mf, rd, vml
    def render(self, head, mf, rd, vml, n):
        out = []
        for h in head:
            out.append(f"s_waitcnt vmcnt({n}) lgkmcnt(0)" if isinstance(h, tuple) else h)
        body = self.schedule(mf, rd, vml)
        fixed = []
        for i, line in enumerate(body):
            if line.endswith(" lds") and fixed and "m0" in fixed[-1].split(",")[0]:
                fixed.append("s_nop 0")
            fixed.append(line)
        return out + fixed
    def schedule(self, mf, rd, vml):
        return spread(mf, merge(rd, vml), self.frac)
    def mainloop(self, e):
        KS = self.KS
        P = 2 * self.NS * self.XD // math.gcd(2 * self.NS, self.XD)
        steps = [self.step(j) for j in range(KS)]
        def same(a, b):
            return [h for h in a[0] if not isinstance(h, tuple)] == [h for h in b[0] if not isinstance(h, tuple)] and a[1:] == b[1:]
        nl = 1
        while (nl + 1) * P <= KS and all(same(steps[nl * P + i], steps[i]) for i in range(P)):
            nl += 1
        if nl > 1:
            e(f"s_mov_b32 s{self.sloop}, {nl}\n.p2align 6\n{self.name}_loop:")
            for i in range(P):
                n = min(steps[it * P + i][0][0][1] for it in range(nl))
                lines = self.render(*steps[i], n)
                if i == P - 1:
                    lines.insert(len(lines) - 2, f"s_sub_u32 s{self.sloop}, s{self.sloop}, 1")
                    lines.append(f"s_cmp_lg_u32 s{self.sloop}, 0")
                    lines.append(f"s_cbranch_scc1 {self.name}_loop")
                e.ext(lines)
            j0 = nl * P
        else:
            j0 = 0
        for j in range(j0, KS):
            e.ext(self.render(*steps[j], steps[j][0][0][1]))
        self.loop_info = (P, nl, j0)
        stamp(e, 2)

def wave_lane(e, vlane, swave, tmp):
    e(f"v_lshrrev_b32 v{tmp}, 6, v0\nv_and_b32 v{vlane}, 63, v0\ns_nop 0\nv_readfirstlane_b32 s{swave}, v{tmp}")

def k_prep(pf=64):
    e = E(); name = "prep_kernel"
    kernel_head(e, name, 256)
    e("s_load_dwordx2 s[4:5], s[0:1], 72\ns_load_dwordx2 s[6:7], s[0:1], 0\ns_load_dwordx2 s[22:23], s[0:1], 16\ns_load_dwordx2 s[34:35], s[0:1], 8")
    wave_lane(e, 1, 21, 2)
    e("s_waitcnt lgkmcnt(0)")
    srd(e, 8, 4, 5, WS_BYTES); srd(e, 12, 6, 7, 0x400000); srd(e, 16, 22, 23, 0x200000)
    e("""
    s_lshl_b32 s24, s2, 3
    s_lshl_b32 s25, s21, 1
    s_add_u32 s24, s24, s25
    v_and_b32 v2, 1, v1
    v_add_u32 v2, s24, v2
    v_lshrrev_b32 v3, 1, v1
    v_lshlrev_b32 v4, 11, v2
    v_lshl_add_u32 v4, v3, 4, v4
    """)
    for i in range(4):
        e(f"buffer_load_dwordx4 v[{16+4*i}:{19+4*i}], v4, s[12:15], 0 offen offset:{512*i}")
    e("""
    s_lshl_b32 s26, s2, 2
    s_add_u32 s26, s26, s21
    s_lshl_b32 s27, s26, 11
    v_lshlrev_b32 v5, 4, v1
    buffer_load_dwordx4 v[8:11], v5, s[16:19], s27 offen
    buffer_load_dwordx4 v[12:15], v5, s[16:19], s27 offen offset:1024
    """)
    npf = 0
    if pf:
        srd(e, 36, 34, 35, 0x600000)
        npf = -(-0x600000 // (65536 * pf))
        e(f"s_lshl_b32 s28, s2, 8\nv_add_u32 v67, s28, v0\nv_mul_u32_u24 v67, {pf}, v67")
        for i in range(npf):
            e(f"s_mov_b32 s28, {i * 65536 * pf}\nbuffer_load_dword v{68+i}, v67, s[36:39], s28 offen")
    e(f"s_waitcnt vmcnt({2 + npf})")
    for r in range(16):
        e(f"v_lshlrev_b32 v{32+2*r}, 16, v{16+r}\nv_and_b32 v{33+2*r}, 0xffff0000, v{16+r}")
    e("v_add_f32 v6, v32, v33")
    for r in range(2, 32):
        e(f"v_add_f32 v6, v6, v{32+r}")
    def red_same_parity(v, t):
        e(f"""
        s_nop 1
        v_add_f32_dpp v{v}, v{v}, v{v} quad_perm:[2,3,0,1] row_mask:0xf bank_mask:0xf
        s_nop 1
        v_add_f32_dpp v{v}, v{v}, v{v} row_ror:4 row_mask:0xf bank_mask:0xf
        s_nop 1
        v_add_f32_dpp v{v}, v{v}, v{v} row_ror:8 row_mask:0xf bank_mask:0xf
        v_mov_b32 v{t}, v{v}
        s_nop 1
        v_permlane16_swap_b32 v{v}, v{t}
        v_add_f32 v{v}, v{v}, v{t}
        v_mov_b32 v{t}, v{v}
        s_nop 1
        v_permlane32_swap_b32 v{v}, v{t}
        v_add_f32 v{v}, v{v}, v{t}
        """)
    red_same_parity(6, 7)
    e(f"v_mul_f32 v6, {hex(f2u(1/1024))}, v6")
    for r in range(32):
        e(f"v_sub_f32 v{32+r}, v{32+r}, v6")
    e("v_mul_f32 v64, v32, v32")
    for r in range(1, 32):
        e(f"v_fmac_f32 v64, v{32+r}, v{32+r}")
    red_same_parity(64, 7)
    e(f"""
    v_mov_b32 v7, {hex(f2u(1e-5))}
    v_fmac_f32 v7, {hex(f2u(1/1024))}, v64
    v_rsq_f32 v7, v7
    s_nop 0
    """)
    for r in range(32):
        e(f"v_mul_f32 v{32+r}, v{32+r}, v7")
    for r in range(16):
        e(f"v_cvt_pk_bf16_f32 v{16+r}, v{32+2*r}, v{33+2*r}")
    e(f"""
    v_lshrrev_b32 v65, 6, v2
    v_lshlrev_b32 v65, 17, v65
    v_bfe_u32 v66, v2, 4, 2
    v_lshl_add_u32 v65, v66, 10, v65
    v_and_b32 v66, 15, v2
    v_lshl_add_u32 v65, v66, 4, v65
    v_lshrrev_b32 v66, 2, v3
    v_lshl_add_u32 v65, v66, 12, v65
    v_and_b32 v66, 3, v3
    v_lshl_add_u32 v65, v66, 8, v65
    """)
    for i in range(4):
        e(f"s_mov_b32 s28, {XN + i*32768}\nbuffer_store_dwordx4 v[{16+4*i}:{19+4*i}], v65, s[8:11], s28 offen")
    e(f"""
    v_lshlrev_b32 v66, 2, v2
    s_mov_b32 s28, {MUX}
    v_cmp_gt_u32 vcc, 2, v1
    s_and_saveexec_b64 s[30:31], vcc
    buffer_store_dword v6, v66, s[8:11], s28 offen
    s_mov_b64 exec, s[30:31]
    s_waitcnt vmcnt({5 + npf})
    """)
    e("v_mov_b32 v6, 0")
    for r in range(8):
        e(f"v_lshlrev_b32 v32, 16, v{8+r}\nv_and_b32 v33, 0xffff0000, v{8+r}\nv_add_f32 v6, v6, v32\nv_add_f32 v6, v6, v33")
    e("s_nop 1\nv_add_f32_dpp v6, v6, v6 quad_perm:[1,0,3,2] row_mask:0xf bank_mask:0xf")
    red_same_parity(6, 7)
    e(f"""
    v_mul_f32 v6, {hex(f2u(1/1024))}, v6
    v_cvt_pk_bf16_f32 v7, v6, v6
    v_and_b32 v32, 0xffff0000, v7
    v_sub_f32 v32, v6, v32
    v_cvt_pk_bf16_f32 v32, v32, v32
    s_lshr_b32 s28, s26, 5
    s_lshl_b32 s28, s28, 7
    s_bfe_u32 s29, s26, 0x10004
    s_lshl_b32 s29, s29, 5
    s_add_u32 s28, s28, s29
    s_bfe_u32 s29, s26, 0x10002
    s_lshl_b32 s29, s29, 4
    s_add_u32 s28, s28, s29
    s_bfe_u32 s29, s26, 0x10003
    s_lshl_b32 s29, s29, 3
    s_add_u32 s28, s28, s29
    s_and_b32 s29, s26, 3
    s_lshl_b32 s29, s29, 1
    s_add_u32 s28, s28, s29
    s_add_u32 s28, s28, {WB}
    v_mov_b32 v33, 0
    v_cmp_gt_u32 vcc, 1, v1
    s_and_saveexec_b64 s[30:31], vcc
    buffer_store_short v7, v33, s[8:11], s28 offen
    buffer_store_short v32, v33, s[8:11], s28 offen offset:64
    s_mov_b64 exec, s[30:31]
    """)
    stamp(e, 1); stamp(e, 2); stamp_out(e, 0, 4, 8, 1)
    kernel_tail(e, name)
    return name, e.text(), descriptor(name, 72, 0), (256, 256, 0)

def k_qkv(NS=4, XD=8):
    e = E(); name = "qkv_kernel"
    g = Gemm("qkv", MT=4, NT=6, KS=32, NS=NS, XD=XD, ndma=3, acc0=0)
    VL, VX, VD, VRE, VRO, VT = 100, 101, 102, 105, 106, 108
    SX, SW, SM = 24, 25, 26
    STG = 12288
    kernel_head(e, name, 256)
    e("s_load_dwordx2 s[4:5], s[0:1], 72\ns_load_dwordx2 s[6:7], s[0:1], 8")
    wave_lane(e, VL, 21, VT)
    e("""
    s_and_b32 s22, s2, 1
    s_lshl_b32 s22, s22, 2
    s_bfe_u32 s23, s2, 0x20003
    s_add_u32 s22, s22, s23
    s_bfe_u32 s23, s2, 0x20001
    s_lshl_b32 s23, s23, 3
    s_lshr_b32 s27, s2, 5
    s_add_u32 s23, s23, s27
    """)
    e(f"""
    s_lshl_b32 s27, s22, 2
    s_add_u32 s27, s27, s21
    s_lshl_b32 s{SX}, s27, 17
    s_add_u32 s{SX}, s{SX}, {XN}
    v_lshlrev_b32 v{VX}, 4, v{VL}
    s_mul_i32 s{SM}, s21, 3072
    s_mul_i32 s28, s21, 192
    s_lshl_b32 s{SW}, s23, 6
    """)
    for i in range(3):
        t = VT
        e(f"""
        v_add_u32 v{t}, s28, v{VL}
        v_add_u32 v{t}, {64*i}, v{t}
        v_mul_u32_u24 v{t+1}, 5462, v{t}
        v_lshrrev_b32 v{t+1}, 16, v{t+1}
        v_mul_u32_u24 v{t+2}, 12, v{t+1}
        v_sub_u32 v{t+2}, v{t}, v{t+2}
        v_bfe_u32 v{t+3}, v{t+1}, 2, 1
        v_bfe_u32 v{t+4}, v{t+1}, 3, 1
        v_and_b32 v{t+5}, 0x33, v{t+1}
        v_lshl_add_u32 v{t+5}, v{t+3}, 3, v{t+5}
        v_lshl_add_u32 v{t+5}, v{t+4}, 2, v{t+5}
        v_mul_u32_u24 v{VD+i}, 6144, v{t+5}
        v_lshlrev_b32 v{t+3}, 1, v{t+3}
        v_xor_b32 v{t+2}, v{t+2}, v{t+3}
        v_lshrrev_b32 v{t+4}, 2, v{t+2}
        v_lshl_add_u32 v{VD+i}, v{t+4}, 11, v{VD+i}
        v_and_b32 v{t+4}, 3, v{t+2}
        v_lshl_add_u32 v{VD+i}, v{t+4}, 4, v{VD+i}
        """)
    t = VT
    e(f"""
    v_bfe_u32 v{t}, v{VL}, 2, 3
    v_lshrrev_b32 v{t+1}, 5, v{VL}
    v_lshl_add_u32 v{t}, v{t+1}, 4, v{t}
    v_mul_u32_u24 v{t}, 192, v{t}
    v_and_b32 v{t+1}, 3, v{VL}
    v_lshl_add_u32 v{t}, v{t+1}, 3, v{t}
    v_bfe_u32 v{t+1}, v{VL}, 4, 1
    v_lshlrev_b32 v{t+1}, 5, v{t+1}
    v_add_u32 v{VRE}, v{t}, v{t+1}
    v_sub_u32 v{VRO}, v{t}, v{t+1}
    v_add_u32 v{VRO}, 32, v{VRO}
    s_waitcnt lgkmcnt(0)
    """)
    srd(e, 8, 4, 5, WS_BYTES); srd(e, 12, 6, 7, 0x600000)
    def wread(nt, dst, slot, kk):
        v = VRE if nt % 2 == 0 else VRO
        off = slot * STG + kk * 6144 + (nt & ~1) * 32
        return [f"ds_read_b64_tr_b16 {ar(dst,2)}, v{v} offset:{off}",
                f"ds_read_b64_tr_b16 {ar(dst+2,2)}, v{v} offset:{off + 8*192}"]
    g.wread = wread
    g.dma = lambda i, slot: (f"s_add_u32 m0, s{SM}, {slot*STG + i*1024}", f"buffer_load_dwordx4 v{VD+i}, s[12:15], s{SW} offen lds")
    g.wadv = lambda: f"s_add_u32 s{SW}, s{SW}, {64*6144}"
    g.xload = lambda dst, mt: f"buffer_load_dwordx4 {ar(dst,4)}, v{VX}, s[8:11], s{SX} offen offset:{mt*1024}"
    g.xadv = lambda: f"s_add_u32 s{SX}, s{SX}, 4096"
    g.swapped = lambda nt: nt >= 4
    g.prologue_loads(e)
    g.zero_acc(e)
    g.first_reads(e)
    g.mainloop(e)
    t = VT
    c = f2u(math.log2(math.e) / math.sqrt(32))
    e(f"""
    v_lshrrev_b32 v{t}, 4, v{VL}
    v_lshlrev_b32 v{t}, 9, v{t}
    v_and_b32 v{t+1}, 15, v{VL}
    v_lshl_add_u32 v{t+2}, v{t+1}, 4, v{t}
    v_and_b32 v{t+3}, 7, v{VL}
    v_lshl_add_u32 v{t+3}, v{t+3}, 4, v{t}
    v_bfe_u32 v{t+4}, v{VL}, 3, 1
    v_lshl_add_u32 v{t+3}, v{t+4}, 8, v{t+3}
    s_lshl_b32 s27, s23, 6
    s_lshl_b32 s28, s22, 3
    s_add_u32 s27, s27, s28
    s_lshl_b32 s28, s21, 1
    s_add_u32 s27, s27, s28
    s_lshl_b32 s28, s27, 11
    s_add_u32 s28, s28, {QF}
    s_lshl_b32 s29, s27, 12
    s_add_u32 s29, s29, {KV}
    s_add_u32 s30, s29, 4096
    s_mov_b32 s32, {hex(c)}
    s_mov_b32 s33, {hex(c)}
    s_nop 4
    """)
    P = t + 8
    k = 0
    def pack(dst, a, b, scale=False):
        if scale:
            for r in (a, a + 2, b, b + 2):
                e(f"v_pk_mul_f32 {vr(r,2)}, {vr(r,2)}, s[32:33]")
        e(f"""v_cvt_pk_bf16_f32 v{dst}, v{a}, v{a+1}
        v_cvt_pk_bf16_f32 v{dst+1}, v{a+2}, v{a+3}
        v_cvt_pk_bf16_f32 v{dst+2}, v{b}, v{b+1}
        v_cvt_pk_bf16_f32 v{dst+3}, v{b+2}, v{b+3}""")
    for mt in range(4):
        d = P + 4 * (k % 4); k += 1
        pack(d, g.acc(0, mt), g.acc(1, mt), True)
        e(f"buffer_store_dwordx4 {vr(d,4)}, v{t+2}, s[8:11], s28 offen offset:{(mt>>1)*2048 + (mt&1)*256}")
        d = P + 4 * (k % 4); k += 1
        pack(d, g.acc(2, mt), g.acc(3, mt))
        e(f"buffer_store_dwordx4 {vr(d,4)}, v{t+3}, s[8:11], s{29 + (mt>>1)} offen offset:{(mt&1)*128}")
    for T in range(2):
        for nt in (4, 5):
            d = P + 4 * (k % 4); k += 1
            pack(d, g.acc(nt, 2*T), g.acc(nt, 2*T + 1))
            e(f"buffer_store_dwordx4 {vr(d,4)}, v{t+2}, s[8:11], s{29 + T} offen offset:{2048 + (nt-4)*256}")
    stamp_out(e, 1, 4, 0, VL)
    kernel_tail(e, name)
    return name, e.text(), descriptor(name, P + 16, g.na), (256, 256, NS * STG)

def k_attn(pf=64):
    e = E(); name = "attn_kernel"
    S = [0, 16]; O = [32, 48]; NM = [64, 80]; Pp = [96, 104]; L = [112, 116]; Q = [120, 128]
    KF = [136, 144]; VF = [152, 160]; ONE = 168
    VL, VA, VG, T = 172, 173, 174, 176
    SK, SM, SL = 24, 25, 26
    kernel_head(e, name, 256)
    e("s_load_dwordx2 s[4:5], s[0:1], 72\ns_load_dwordx2 s[36:37], s[0:1], 16\ns_load_dwordx4 s[40:43], s[0:1], 32\ns_load_dwordx2 s[38:39], s[0:1], 48")
    wave_lane(e, VL, 21, T)
    e(f"""
    s_and_b32 s23, s2, 7
    s_lshl_b32 s23, s23, 2
    s_lshr_b32 s27, s2, 6
    s_add_u32 s23, s23, s27
    s_bfe_u32 s22, s2, 0x30003
    v_lshlrev_b32 v{VG}, 4, v{VL}
    v_mov_b32 v{VA}, v{VG}
    s_lshl_b32 s27, s23, 18
    s_add_u32 s34, s27, {KV}
    s_lshl_b32 s{SM}, s21, 12
    s_add_u32 s{SK}, s34, s{SM}
    s_lshl_b32 s27, s23, 6
    s_lshl_b32 s28, s22, 3
    s_add_u32 s27, s27, s28
    s_lshl_b32 s28, s21, 1
    s_add_u32 s27, s27, s28
    s_lshl_b32 s28, s27, 11
    s_add_u32 s28, s28, {QF}
    s_waitcnt lgkmcnt(0)
    """)
    srd(e, 8, 4, 5, WS_BYTES)
    VP = T + 8
    if pf:
        e(f"""s_cmp_eq_u32 s21, 1
        s_cselect_b32 s40, s42, s40
        s_cselect_b32 s41, s43, s41
        s_cmp_eq_u32 s21, 2
        s_cselect_b32 s40, s38, s40
        s_cselect_b32 s41, s39, s41
        s_mov_b32 s14, {1024*7168}
        s_cmp_eq_u32 s21, 3
        s_cselect_b32 s12, s36, s40
        s_cselect_b32 s13, s37, s41
        s_cselect_b32 s14, 0x200000, s14
        s_mov_b32 s15, 0x00020000
        s_lshl_b32 s30, s2, 6
        v_add_u32 v{VP}, s30, v{VL}
        v_mul_u32_u24 v{VP}, {pf}, v{VP}
        """)
    pfl = [f"buffer_load_dword v{VP+1}, v{VP}, s[12:15], 0 offen", f"v_add_u32 v{VP}, {16384*pf}, v{VP}"] if pf else []
    def dma_stage(soff):
        return [f"buffer_load_dwordx4 v{VG}, s[8:11], s{soff} offen offset:{i*1024} lds" for i in range(4)]
    e(f"s_mov_b32 m0, s{SM}\ns_nop 0")
    e.ext(dma_stage(SK))
    for x in range(2):
        for s in range(2):
            e(f"buffer_load_dwordx4 {vr(Q[x]+4*s,4)}, v{VG}, s[8:11], s28 offen offset:{x*2048 + s*1024}")
    for st in range(1, 3):
        e(f"s_add_u32 s{SK}, s{SK}, 16384\ns_add_u32 m0, s{SM}, {st*16384}\ns_nop 0")
        e.ext(dma_stage(SK))
        if st == 1:
            e.ext(pfl)
    e(f"""
    v_and_b32 v{T}, 3, v{VL}
    v_bfe_u32 v{T+1}, v{VL}, 2, 1
    v_bfe_u32 v{T+2}, v{VL}, 4, 1
    v_xor_b32 v{T+1}, v{T+1}, v{T+2}
    v_or_b32 v{T}, v{T}, v{T+1}
    v_mov_b32 v{T+1}, 0x3f803f80
    v_cmp_eq_u32 vcc, 0, v{T}
    s_nop 1
    v_cndmask_b32 v{ONE}, 0, v{T+1}, vcc
    v_mov_b32 v{ONE+1}, v{ONE}
    v_mov_b32 v{ONE+2}, v{ONE}
    v_mov_b32 v{ONE+3}, v{ONE}
    """)
    def zero_state():
        for x in range(2):
            for r in range(16): e(f"v_mov_b32 v{O[x]+r}, 0")
            for r in range(4): e(f"v_mov_b32 v{L[x]+r}, 0")
    zero_state()
    for r in range(8):
        e(f"v_mov_b32 v{Pp[1]+r}, 0\nv_mov_b32 v{VF[1]+r}, 0")
    def qk(x, kf, c):
        return [f"v_mfma_f32_32x32x16_bf16 {vr(S[x],16)}, {vr(kf,4)}, {vr(Q[x],4)}, {c}",
                f"v_mfma_f32_32x32x16_bf16 {vr(S[x],16)}, {vr(kf+4,4)}, {vr(Q[x]+4,4)}, {vr(S[x],16)}"]
    def pv(x, vf):
        return [f"v_mfma_f32_32x32x16_bf16 {vr(O[x],16)}, {vr(vf,4)}, {vr(Pp[x],4)}, {vr(O[x],16)}",
                f"v_mfma_f32_32x32x16_bf16 {vr(O[x],16)}, {vr(vf+4,4)}, {vr(Pp[x]+4,4)}, {vr(O[x],16)}",
                f"v_mfma_f32_16x16x32_bf16 {vr(L[x],4)}, {vr(ONE,4)}, {vr(Pp[x],4)}, {vr(L[x],4)}",
                f"v_mfma_f32_16x16x32_bf16 {vr(L[x],4)}, {vr(ONE,4)}, {vr(Pp[x]+4,4)}, {vr(L[x],4)}"]
    def tile_max(x, m, init):
        if init:
            e(f"v_max3_f32 v{m}, v{S[x]}, v{S[x]+1}, v{S[x]+2}\nv_max_f32 v{m}, v{m}, v{S[x]+3}")
        else:
            e(f"v_max3_f32 v{m}, v{S[x]}, v{S[x]+1}, v{m}\nv_max3_f32 v{m}, v{S[x]+2}, v{S[x]+3}, v{m}")
        for r in range(4, 16, 2):
            e(f"v_max3_f32 v{m}, v{S[x]+r}, v{S[x]+r+1}, v{m}")
    def set_negmax(x, m):
        e(f"""v_mov_b32 v{T+4}, v{m}
        s_nop 1
        v_permlane32_swap_b32 v{m}, v{T+4}
        v_max_f32 v{m}, v{m}, v{T+4}""")
        for r in range(16):
            e(f"v_sub_f32 v{NM[x]+r}, 0, v{m}")
    e(f"s_waitcnt vmcnt({9 if pf else 8})\ns_barrier")
    stamp(e, 1)
    e(f"ds_read_b128 {vr(KF[0],4)}, v{VA}\nds_read_b128 {vr(KF[0]+4,4)}, v{VA} offset:1024\ns_waitcnt lgkmcnt(0)")
    e.ext(qk(0, KF[0], "0")); e.ext(qk(1, KF[0], "0"))
    e("s_nop 15")
    tile_max(0, T, True); tile_max(1, T+1, True)
    set_negmax(0, T); set_negmax(1, T+1)
    e("s_nop 1")
    e.ext(qk(0, KF[0], vr(NM[0], 16)))
    e(f"s_mov_b32 s{SL}, 0\ns_nop 15")
    def phase(x, mf, extra):
        ex = [f"v_exp_f32 v{S[x]+r}, v{S[x]+r}" for r in range(16)]
        cv = [f"v_cvt_pk_bf16_f32 v{Pp[x]+r}, v{S[x]+2*r}, v{S[x]+2*r+1}" for r in range(8)]
        groups = [ex[0:3], ex[3:6], [ex[6], ex[7], cv[0], cv[1]], [ex[8], ex[9], cv[2], cv[3]], [ex[10]],
                  [ex[11], ex[12], ex[13], cv[4], ex[14], cv[5], ex[15], cv[6], None, cv[7]]]
        out = []
        for i in range(6):
            out.append(mf[i])
            out += extra[i]
            for ins in groups[i]:
                if ins is None:
                    out += extra[6]
                else:
                    out.append(ins)
        return out
    e(".p2align 6\nattn_loop:")
    for tt in range(4):
        kc, kn = KF[tt & 1], KF[(tt + 1) & 1]
        vc, vp = VF[tt & 1], VF[(tt + 1) & 1]
        rdv = [f"ds_read_b128 {vr(vc,4)}, v{VA} offset:{tt*4096 + 2048}", f"ds_read_b128 {vr(vc+4,4)}, v{VA} offset:{tt*4096 + 3072}"]
        ko = ((tt + 1) & 3) * 4096
        rdk = [f"ds_read_b128 {vr(kn,4)}, v{VA} offset:{ko}", f"ds_read_b128 {vr(kn+4,4)}, v{VA} offset:{ko + 1024}"]
        if tt == 3:
            extra = [[rdv[0]], [rdv[1], f"v_add_u32 v{VA}, 0x4000, v{VA}"], [f"v_and_b32 v{VA}, 0xffff, v{VA}", rdk[0]], [rdk[1]], [], [], []]
        else:
            extra = [[rdk[0]], [rdk[1]], [rdv[0]], [rdv[1]], [], [], []]
        e.ext(phase(0, qk(1, kc, vr(NM[1], 16)) + pv(1, vp), extra))
        e("s_waitcnt lgkmcnt(0)")
        extra = [[] for _ in range(7)]
        if tt == 0 and pf:
            extra[0] = pfl[:1]; extra[1] = pfl[1:]
        if tt == 2:
            extra = [[f"s_add_u32 s{SK}, s{SK}, 16384", f"s_add_u32 s29, s{SL}, 3"],
                     [f"s_cmp_lt_u32 s29, 16", f"s_cselect_b32 s27, s{SK}, {hex(WS_BYTES)}"],
                     ["s_and_b32 s29, s29, 3", "s_lshl_b32 s29, s29, 14"], [f"s_add_u32 m0, s29, s{SM}"], [], [],
                     [f"s_waitcnt vmcnt({6 if pf else 4})"]]
        if tt == 3:
            d = dma_stage(27)
            extra = [[d[0]], [d[1]], [d[2]], [d[3]], [f"s_add_u32 s{SL}, s{SL}, 1"], [], [f"s_cmp_lt_u32 s{SL}, 16"]]
        e.ext(phase(1, qk(0, kn, vr(NM[0], 16)) + pv(0, vc), extra))
        if tt == 2:
            e("s_barrier")
    e("s_cbranch_scc1 attn_loop")
    stamp(e, 2)
    e("s_nop 1")
    e.ext(pv(1, VF[1]))
    e(f"s_nop 15\nv_mov_b32 v{T}, 0")
    for x in range(2):
        for r in range(16):
            e(f"v_fma_f32 v{T}, v{O[x]+r}, 0, v{T}")
    e(f"""
    v_max_f32 v{T+1}, v{L[0]}, v{L[1]}
    v_add_f32 v{T+2}, v{L[0]}, v{L[1]}
    v_fma_f32 v{T}, v{T+2}, 0, v{T}
    v_add_f32 v{T}, v{T}, v{T+1}
    v_mov_b32 v{T+1}, {hex(f2u(2.0**100))}
    v_cmp_nlt_f32 vcc, v{T}, v{T+1}
    s_cbranch_vccnz attn_slow
    attn_out:
    """)
    e(f"""
    v_rcp_f32 v{T}, v{L[0]}
    v_rcp_f32 v{T+2}, v{L[1]}
    v_bfe_u32 v{T+4}, v{VL}, 4, 1
    v_lshlrev_b32 v{T+4}, 10, v{T+4}
    v_and_b32 v{T+5}, 15, v{VL}
    v_lshl_add_u32 v{T+4}, v{T+5}, 4, v{T+4}
    v_lshrrev_b32 v{T+5}, 5, v{VL}
    v_lshl_add_u32 v{T+4}, v{T+5}, 8, v{T+4}
    s_lshl_b32 s27, s22, 3
    s_lshl_b32 s28, s21, 1
    s_add_u32 s27, s27, s28
    s_lshl_b32 s27, s27, 16
    s_lshl_b32 s28, s23, 11
    s_add_u32 s27, s27, s28
    s_add_u32 s28, s27, {OF}
    s_add_u32 s29, s28, 65536
    """)
    for x in range(2):
        for r in range(0, 16, 2):
            e(f"v_pk_mul_f32 {vr(O[x]+r,2)}, {vr(O[x]+r,2)}, {vr(T+2*x,2)} op_sel_hi:[1,0]")
        for r in range(8):
            e(f"v_cvt_pk_bf16_f32 v{Pp[x]+r}, v{O[x]+2*r}, v{O[x]+2*r+1}")
        for ci in range(2):
            e(f"buffer_store_dwordx4 {vr(Pp[x]+4*ci,4)}, v{T+4}, s[8:11], s{28+x} offen offset:{ci*512}")
    stamp_out(e, 2, 4, 0, VL)
    e("s_endpgm")
    e("attn_slow:\ns_waitcnt vmcnt(0) lgkmcnt(0)")
    e(f"v_mov_b32 v{T}, 0xff800000\nv_mov_b32 v{T+1}, 0xff800000\ns_mov_b32 s27, s34\ns_mov_b32 s{SL}, 0")
    e("attn_slow_max:")
    e(f"""buffer_load_dwordx4 {vr(KF[0],4)}, v{VG}, s[8:11], s27 offen
    buffer_load_dwordx4 {vr(KF[0]+4,4)}, v{VG}, s[8:11], s27 offen offset:1024
    s_waitcnt vmcnt(0)""")
    e.ext(qk(0, KF[0], "0")); e.ext(qk(1, KF[0], "0"))
    e("s_nop 15")
    tile_max(0, T, False); tile_max(1, T+1, False)
    e(f"s_add_u32 s27, s27, 4096\ns_add_u32 s{SL}, s{SL}, 1\ns_cmp_lt_u32 s{SL}, 64\ns_cbranch_scc1 attn_slow_max")
    set_negmax(0, T); set_negmax(1, T+1)
    zero_state()
    e(f"s_mov_b32 s27, s34\ns_mov_b32 s{SL}, 0")
    e("attn_slow_acc:")
    for i, r in enumerate((KF[0], KF[0]+4, VF[0], VF[0]+4)):
        e(f"buffer_load_dwordx4 {vr(r,4)}, v{VG}, s[8:11], s27 offen offset:{i*1024}")
    e("s_waitcnt vmcnt(0)")
    e.ext(qk(0, KF[0], vr(NM[0], 16))); e.ext(qk(1, KF[0], vr(NM[1], 16)))
    e("s_nop 15")
    for x in range(2):
        for r in range(16): e(f"v_exp_f32 v{S[x]+r}, v{S[x]+r}")
        e("s_nop 0")
        for r in range(8): e(f"v_cvt_pk_bf16_f32 v{Pp[x]+r}, v{S[x]+2*r}, v{S[x]+2*r+1}")
    e("s_nop 1")
    e.ext(pv(0, VF[0])); e.ext(pv(1, VF[0]))
    e(f"s_nop 15\ns_add_u32 s27, s27, 4096\ns_add_u32 s{SL}, s{SL}, 1\ns_cmp_lt_u32 s{SL}, 64\ns_cbranch_scc1 attn_slow_acc")
    e("s_branch attn_out")
    kernel_tail(e, name)
    return name, e.text(), descriptor(name, T + 10, 0), (256, 256, 65536)

def setup_128x64(e, g, VL, VX, VD, VR, VT, SX, SW, SM, xbase, xblock, lds0=0):
    STG = 8192
    e("""
    s_bfe_u32 s22, s2, 0x20001
    s_lshl_b32 s22, s22, 2
    s_bfe_u32 s23, s2, 0x20003
    s_add_u32 s22, s22, s23
    s_and_b32 s23, s2, 1
    s_lshl_b32 s23, s23, 3
    s_lshr_b32 s27, s2, 5
    s_add_u32 s23, s23, s27
    """)
    t = VT
    e(f"""
    s_lshl_b32 s35, s22, 2
    s_add_u32 s35, s35, s21
    s_mul_i32 s{SX}, s35, {xblock}
    s_add_u32 s{SX}, s{SX}, {xbase}
    v_lshlrev_b32 v{VX}, 4, v{VL}
    s_lshl_b32 s{SM}, s21, 11
    s_lshl_b32 s{SW}, s23, 7
    s_lshl_b32 s28, s21, 4
    v_lshrrev_b32 v{t}, 3, v{VL}
    v_add_u32 v{t}, s28, v{t}
    v_bfe_u32 v{t+1}, v{t}, 1, 2
    v_bfe_u32 v{t+2}, v{VL}, 1, 2
    v_xor_b32 v{t+1}, v{t+1}, v{t+2}
    v_lshlrev_b32 v{t+1}, 5, v{t+1}
    v_and_b32 v{t+2}, 1, v{VL}
    v_lshl_add_u32 v{t+1}, v{t+2}, 4, v{t+1}
    v_lshl_add_u32 v{VD}, v{t}, 11, v{t+1}
    v_add_u32 v{VD+1}, {8*2048}, v{VD}
    v_bfe_u32 v{t}, v{VL}, 2, 3
    v_lshrrev_b32 v{t+1}, 1, v{t}
    v_lshrrev_b32 v{t+2}, 5, v{VL}
    v_lshl_add_u32 v{t}, v{t+2}, 4, v{t}
    v_lshlrev_b32 v{t}, 7, v{t}
    v_and_b32 v{t+2}, 3, v{VL}
    v_lshl_add_u32 v{t}, v{t+2}, 3, v{t}
    """)
    for nt in range(4):
        e(f"v_xor_b32 v{t+2}, {nt}, v{t+1}\nv_lshl_add_u32 v{VR+nt}, v{t+2}, 5, v{t}")
    def wread(nt, dst, slot, kk):
        off = lds0 + slot * STG + kk * 4096
        return [f"ds_read_b64_tr_b16 {ar(dst,2)}, v{VR+nt} offset:{off}",
                f"ds_read_b64_tr_b16 {ar(dst+2,2)}, v{VR+nt} offset:{off + 1024}"]
    g.wread = wread
    g.dma = lambda i, slot: (f"s_add_u32 m0, s{SM}, {lds0 + slot*STG + i*1024}", f"buffer_load_dwordx4 v{VD+i}, s[12:15], s{SW} offen lds")
    g.wadv = lambda: f"s_add_u32 s{SW}, s{SW}, {64*2048}"
    g.xload = lambda dst, mt: f"buffer_load_dwordx4 {ar(dst,4)}, v{VX}, s[8:11], s{SX} offen offset:{mt*1024}"
    g.xadv = lambda: f"s_add_u32 s{SX}, s{SX}, 2048"

def red_groups(e, v, t):
    e(f"""v_mov_b32 v{t}, v{v}
    s_nop 1
    v_permlane16_swap_b32 v{v}, v{t}
    v_add_f32 v{v}, v{v}, v{t}
    v_mov_b32 v{t}, v{v}
    s_nop 1
    v_permlane32_swap_b32 v{v}, v{t}
    v_add_f32 v{v}, v{v}, v{t}""")

def k_oproj(NS=4, XD=8):
    e = E(); name = "oproj_kernel"
    g = Gemm("oproj", MT=2, NT=4, KS=32, NS=NS, XD=XD, ndma=2, acc0=0, NX=1, frac=0.7)
    VL, VX, VD, VR, VB, VXD, VMU, VT = 40, 41, 42, 44, 48, 49, 50, 52
    SX, SW, SM = 24, 25, 26
    LWB = NS * 8192; LX = LWB + 4096
    kernel_head(e, name, 256)
    e("s_load_dwordx2 s[4:5], s[0:1], 72\ns_load_dwordx2 s[6:7], s[0:1], 16\ns_load_dwordx2 s[36:37], s[0:1], 0")
    wave_lane(e, VL, 21, VT)
    setup_128x64(e, g, VL, VX, VD, VR, VT, SX, SW, SM, OF, 65536)
    base_read = g.wread
    def wread(nt, dst, slot, kk):
        if nt < 4:
            return base_read(nt, dst, slot, kk)
        return [f"ds_read_b128 {ar(dst,4)}, v{VB}", f"v_add_u32 v{VB}, 128, v{VB}"]
    g.wread = wread
    t = VT
    if STAT is None:
        mux_alt = f"v_mov_b32 v{t+9}, v{t+8}"; mstep = 64
    else:
        mux_alt = f"""s_lshl_b32 s34, s35, 11
        s_add_u32 s34, s34, {STAT}
        v_lshrrev_b32 v{t+1}, 1, v{t}
        v_lshlrev_b32 v{t+1}, 7, v{t+1}
        v_and_b32 v{t+2}, 1, v{t}
        v_lshl_add_u32 v{t+9}, v{t+2}, 4, v{t+1}"""; mstep = 1024
    e(f"""
    v_and_b32 v{t}, 1, v{VL}
    v_lshlrev_b32 v{t}, 6, v{t}
    v_lshrrev_b32 v{t+1}, 4, v{VL}
    v_lshl_add_u32 v{t}, v{t+1}, 4, v{t}
    v_add_u32 v{VB}, {LWB}, v{t}
    v_lshrrev_b32 v{t}, 3, v{VL}
    v_lshrrev_b32 v{t+1}, 4, v{VL}
    v_and_b32 v{t+2}, 7, v{VL}
    v_xor_b32 v{t+1}, v{t+1}, v{t+2}
    v_lshlrev_b32 v{t+1}, 4, v{t+1}
    v_lshl_add_u32 v{VXD}, v{t}, 11, v{t+1}
    v_and_b32 v{t}, 15, v{VL}
    v_lshlrev_b32 v{t+8}, 2, v{t}
    s_lshl_b32 s29, s21, 10
    s_add_u32 s30, s29, {WB}
    s_lshl_b32 s31, s35, 16
    s_lshl_b32 s28, s23, 7
    s_add_u32 s31, s31, s28
    s_lshl_b32 s32, s21, 12
    s_lshl_b32 s33, s35, 7
    s_add_u32 s34, s33, {MUX}
    {mux_alt}
    s_waitcnt lgkmcnt(0)
    """)
    srd(e, 8, 4, 5, WS_BYTES); srd(e, 12, 6, 7, 0x200000); srd(e, 16, 36, 37, 0x400000)
    first = [(f"s_add_u32 m0, s29, {LWB}", None), (f"buffer_load_dwordx4 v{VX}, s[8:11], s30 offen lds", ("wb", 0))]
    tail = []
    for i in range(4):
        if i:
            tail.append((f"v_xor_b32 v{VXD}, 64, v{VXD}", None))
            tail.append((f"s_add_u32 s31, s31, {8*2048}", None))
        tail.append((f"s_add_u32 m0, s32, {LX + i*1024}", None))
        tail.append((f"buffer_load_dwordx4 v{VXD}, s[16:19], s31 offen lds", ("xt", 0)))
    g.extra_tail[26] = tail[:6]
    g.extra_tail[27] = tail[6:]
    g.extra_tail[28] = [(f"buffer_load_dword v{VMU+mt}, v{t+9}, s[8:11], s34 offen offset:{mt*mstep}", ("mu", 0)) for mt in range(2)]
    g.prologue_loads(e, first=first)
    g.zero_acc(e)
    g.first_reads(e, tags=[("wb", 0)])
    g.mainloop(e)
    XR = t + 10
    e(f"""
    v_and_b32 v{t}, 15, v{VL}
    v_lshrrev_b32 v{t+1}, 1, v{t}
    v_lshrrev_b32 v{t+2}, 5, v{VL}
    v_xor_b32 v{t+1}, v{t+1}, v{t+2}
    v_lshlrev_b32 v{t}, 7, v{t}
    v_bfe_u32 v{t+2}, v{VL}, 4, 1
    v_lshl_add_u32 v{t}, v{t+2}, 3, v{t}
    v_add_u32 v{t}, s32, v{t}
    s_waitcnt vmcnt(0)
    """)
    for nt in range(4):
        e(f"v_xor_b32 v{t+2}, {2*nt}, v{t+1}\nv_lshl_add_u32 v{t+2}, v{t+2}, 4, v{t}")
        for mt in range(2):
            e(f"ds_read_b64 {vr(XR + (nt*2+mt)*2, 2)}, v{t+2} offset:{LX + mt*2048}")
    e("s_nop 4")
    for mt in range(2):
        a = g.acc(4, mt)
        e(f"v_add_f32 v{a}, v{a}, v{a+1}\nv_add_f32 v{VMU+mt}, v{VMU+mt}, v{a}")
    e(f"""
    s_lshr_b32 s27, s35, 1
    s_lshl_b32 s27, s27, 17
    s_and_b32 s28, s35, 1
    s_lshl_b32 s28, s28, 11
    s_add_u32 s27, s27, s28
    s_lshl_b32 s28, s23, 13
    s_add_u32 s27, s27, s28
    s_add_u32 s28, s27, {HC}
    s_add_u32 s29, s28, 4096
    s_waitcnt lgkmcnt(0)
    """)
    PK = XR + 16
    SS = t + 4
    for mt in range(2):
        for nt in range(4):
            a = g.acc(nt, mt); xr = XR + (nt*2+mt)*2
            e(f"""v_lshlrev_b32 v{t}, 16, v{xr}
            v_and_b32 v{t+1}, 0xffff0000, v{xr}
            v_lshlrev_b32 v{t+2}, 16, v{xr+1}
            v_and_b32 v{t+3}, 0xffff0000, v{xr+1}""")
            for r in range(4):
                e(f"v_sub_f32 v{a+r}, v{a+r}, v{VMU+mt}")
            e(f"v_pk_add_f32 {vr(a,2)}, {vr(a,2)}, {vr(t,2)}\nv_pk_add_f32 {vr(a+2,2)}, {vr(a+2,2)}, {vr(t+2,2)}")
            for r in range(4):
                if nt == 0 and r == 0:
                    e(f"v_mul_f32 v{SS+mt}, v{a}, v{a}")
                else:
                    e(f"v_fmac_f32 v{SS+mt}, v{a+r}, v{a+r}")
            d = PK + (mt*2 + (nt >> 1)) * 4 + (nt & 1) * 2
            e(f"v_cvt_pk_bf16_f32 v{d}, v{a}, v{a+1}\nv_cvt_pk_bf16_f32 v{d+1}, v{a+2}, v{a+3}")
            if nt & 1:
                e(f"buffer_store_dwordx4 {vr(d-2,4)}, v{VX}, s[8:11], s{28 + (nt>>1)} offen offset:{mt*1024}")
    for mt in range(2):
        red_groups(e, SS + mt, t)
    e(f"""
    v_lshlrev_b32 v{t}, 4, v{t+8}
    s_lshl_b32 s27, s35, 11
    s_lshl_b32 s28, s23, 2
    s_add_u32 s27, s27, s28
    s_add_u32 s27, s27, {SSQ}
    s_add_u32 s28, s33, {MU2}
    v_cmp_gt_u32 vcc, 16, v{VL}
    s_and_saveexec_b64 s[38:39], vcc
    buffer_store_dword v{SS}, v{t}, s[8:11], s27 offen
    buffer_store_dword v{SS+1}, v{t}, s[8:11], s27 offen offset:1024
    s_cmp_lg_u32 s23, 0
    s_cbranch_scc1 oproj_done
    buffer_store_dword v{VMU}, v{t+8}, s[8:11], s28 offen
    buffer_store_dword v{VMU+1}, v{t+8}, s[8:11], s28 offen offset:64
    oproj_done:
    """)
    stamp_out(e, 3, 4, 0, VL)
    kernel_tail(e, name)
    return name, e.text(), descriptor(name, PK + 16, g.na), (256, 256, LX + 16384)

def k_gateup(NS=4, XD=4):
    e = E(); name = "gateup_kernel"
    g = Gemm("gateup", MT=4, NT=14, KS=32, NS=NS, XD=XD, ndma=7, acc0=0, frac=0.85)
    VL, VX, VD, VR, VT = 224, 225, 226, 233, 236
    SX, SW, SM = 24, 25, 26
    STG = 28672
    kernel_head(e, name, 256)
    e("s_load_dwordx2 s[4:5], s[0:1], 72\ns_load_dwordx4 s[36:39], s[0:1], 32")
    wave_lane(e, VL, 21, VT)
    e("""
    s_and_b32 s22, s2, 1
    s_lshl_b32 s22, s22, 2
    s_bfe_u32 s23, s2, 0x20003
    s_add_u32 s22, s22, s23
    s_bfe_u32 s23, s2, 0x20001
    s_lshl_b32 s23, s23, 3
    s_lshr_b32 s27, s2, 5
    s_add_u32 s23, s23, s27
    """)
    t = VT
    e(f"""
    s_lshl_b32 s35, s22, 2
    s_add_u32 s35, s35, s21
    s_lshl_b32 s{SX}, s35, 17
    s_add_u32 s{SX}, s{SX}, {HC}
    v_lshlrev_b32 v{VX}, 4, v{VL}
    s_mul_i32 s{SM}, s21, 7168
    s_and_b32 s28, s21, 1
    s_mul_i32 s28, s28, 448
    s_mul_i32 s{SW}, s23, 224
    """)
    for i in range(7):
        e(f"""
        v_add_u32 v{t}, s28, v{VL}
        v_add_u32 v{t}, {64*i}, v{t}
        v_mul_u32_u24 v{t+1}, 4682, v{t}
        v_lshrrev_b32 v{t+1}, 16, v{t+1}
        v_mul_u32_u24 v{t+2}, 14, v{t+1}
        v_sub_u32 v{t+2}, v{t}, v{t+2}
        v_mul_u32_u24 v{t+1}, 7168, v{t+1}
        v_lshl_add_u32 v{VD+i}, v{t+2}, 4, v{t+1}
        """)
    e(f"""
    v_lshrrev_b32 v{t}, 2, v{VL}
    v_mul_u32_u24 v{t}, 224, v{t}
    v_and_b32 v{t+1}, 3, v{VL}
    v_lshl_add_u32 v{VR}, v{t+1}, 3, v{t}
    v_add_u32 v{VR+1}, {2*STG}, v{VR}
    v_add_u32 v{VR+2}, {4*STG}, v{VR}
    s_waitcnt lgkmcnt(0)
    s_cmp_lt_u32 s21, 2
    s_cselect_b32 s6, s36, s38
    s_cselect_b32 s7, s37, s39
    """)
    srd(e, 8, 4, 5, WS_BYTES); srd(e, 12, 6, 7, 1024 * 7168)
    def wread(nt, dst, slot, kk):
        off = (slot & 1) * STG + (nt // 7) * 14336 + kk * 7168 + (nt % 7) * 32
        v = VR + (slot >> 1)
        return [f"ds_read_b64_tr_b16 {ar(dst,2)}, v{v} offset:{off}",
                f"ds_read_b64_tr_b16 {ar(dst+2,2)}, v{v} offset:{off + 3584}"]
    g.wread = wread
    g.dma = lambda i, slot: (f"s_add_u32 m0, s{SM}, {slot*STG + i*1024}", f"buffer_load_dwordx4 v{VD+i}, s[12:15], s{SW} offen lds")
    g.wadv = lambda: f"s_add_u32 s{SW}, s{SW}, {64*7168}"
    g.xload = lambda dst, mt: f"buffer_load_dwordx4 {ar(dst,4)}, v{VX}, s[8:11], s{SX} offen offset:{mt*1024}"
    g.xadv = lambda: f"s_add_u32 s{SX}, s{SX}, 4096"
    g.prologue_loads(e)
    g.zero_acc(e)
    g.first_reads(e)
    g.mainloop(e)
    e(f"""
    v_lshrrev_b32 v{t}, 5, v{VL}
    v_lshlrev_b32 v{t}, 10, v{t}
    v_and_b32 v{t+1}, 31, v{VL}
    v_lshl_add_u32 v{t}, v{t+1}, 4, v{t}
    v_add_u32 v{t+1}, 229376, v{t}
    s_mul_i32 s27, s35, {2*229376}
    s_add_u32 s27, s27, {ACT}
    s_mul_i32 s28, s23, 7
    """)
    k = 0
    for ft in range(7):
        e(f"""s_add_u32 s29, s28, {ft}
        s_lshr_b32 s30, s29, 1
        s_lshl_b32 s30, s30, 11
        s_and_b32 s29, s29, 1
        s_lshl_b32 s29, s29, 9
        s_add_u32 s30, s30, s29
        s_add_u32 s{40+ft}, s30, s27""")
    for ft in range(7):
        for a in range(2):
            d = t + 4 + 4 * (k % 4); k += 1
            for h in range(2):
                ga, ua = g.acc(ft, 2*a + h), g.acc(ft + 7, 2*a + h)
                e(f"""v_pk_mul_f32 {vr(ga,2)}, {vr(ga,2)}, {vr(ua,2)}
                v_pk_mul_f32 {vr(ga+2,2)}, {vr(ga+2,2)}, {vr(ua+2,2)}
                v_cvt_pk_bf16_f32 v{d+2*h}, v{ga}, v{ga+1}
                v_cvt_pk_bf16_f32 v{d+2*h+1}, v{ga+2}, v{ga+3}""")
            e(f"""s_nop 1
            v_permlane32_swap_b32 v{d}, v{d+2}
            v_permlane32_swap_b32 v{d+1}, v{d+3}
            buffer_store_dwordx4 {vr(d,4)}, v{t+a}, s[8:11], s{40+ft} offen""")
    stamp_out(e, 4, 4, 0, VL)
    kernel_tail(e, name)
    return name, e.text(), descriptor(name, 256, g.na), (256, 256, NS * STG)

def k_down(NS=4, XD=8):
    e = E(); name = "down_kernel"
    g = Gemm("down", MT=2, NT=4, KS=112, NS=NS, XD=XD, ndma=2, acc0=0, frac=0.7)
    VL, VX, VD, VR, VMU, VT = 32, 33, 34, 36, 40, 44
    HR, SQ = 56, 72
    SX, SW, SM = 24, 25, 26
    LO = NS * 8192
    kernel_head(e, name, 256)
    e("s_load_dwordx2 s[4:5], s[0:1], 72\ns_load_dwordx4 s[36:39], s[0:1], 48")
    wave_lane(e, VL, 21, VT)
    setup_128x64(e, g, VL, VX, VD, VR, VT, SX, SW, SM, ACT, 229376)
    t = VT
    e(f"""
    s_lshr_b32 s27, s35, 1
    s_lshl_b32 s27, s27, 17
    s_and_b32 s28, s35, 1
    s_lshl_b32 s28, s28, 11
    s_add_u32 s27, s27, s28
    s_lshl_b32 s28, s23, 13
    s_add_u32 s27, s27, s28
    s_add_u32 s30, s27, {HC}
    s_add_u32 s31, s30, 4096
    s_lshl_b32 s32, s35, 7
    s_add_u32 s32, s32, {MU2}
    s_lshl_b32 s33, s35, 11
    s_add_u32 s33, s33, {SSQ}
    v_and_b32 v{t}, 15, v{VL}
    v_lshlrev_b32 v{t+8}, 2, v{t}
    v_lshrrev_b32 v{t+1}, 4, v{VL}
    v_lshlrev_b32 v{t+1}, 4, v{t+1}
    v_lshl_add_u32 v{t+9}, v{t}, 6, v{t+1}
    s_waitcnt lgkmcnt(0)
    """)
    srd(e, 8, 4, 5, WS_BYTES); srd(e, 12, 36, 37, 3584 * 2048); srd(e, 16, 38, 39, 0x400000)
    g.extra_tail[106] = [(f"buffer_load_dwordx4 {vr(SQ + 4*mt,4)}, v{t+9}, s[8:11], s33 offen offset:{mt*1024}", ("r", 0)) for mt in range(2)] + \
                        [(f"buffer_load_dword v{VMU+mt}, v{t+8}, s[8:11], s32 offen offset:{mt*64}", ("r", 0)) for mt in range(2)]
    g.extra_tail[107] = [(f"buffer_load_dwordx4 {vr(HR + (mt*2+p)*4,4)}, v{VX}, s[8:11], s{30+p} offen offset:{mt*1024}", ("r", 0)) for mt in range(2) for p in range(2)]
    g.prologue_loads(e)
    g.zero_acc(e)
    g.first_reads(e)
    g.mainloop(e)
    e("s_waitcnt vmcnt(0)")
    for mt in range(2):
        q = SQ + 4 * mt
        e(f"v_add_f32 v{q}, v{q}, v{q+1}\nv_add_f32 v{q+2}, v{q+2}, v{q+3}\nv_add_f32 v{q}, v{q}, v{q+2}")
        red_groups(e, q, t)
        e(f"v_mov_b32 v{q+1}, {hex(f2u(1e-5))}\nv_fmac_f32 v{q+1}, {hex(f2u(1/1024))}, v{q}\nv_rcp_f32 v{q}, v{q+1}")
    e(f"""
    s_lshl_b32 s27, s21, 12
    s_add_u32 s27, s27, {LO}
    v_and_b32 v{t}, 15, v{VL}
    v_and_b32 v{t+1}, 7, v{VL}
    v_lshrrev_b32 v{t+2}, 5, v{VL}
    v_xor_b32 v{t+1}, v{t+1}, v{t+2}
    v_lshlrev_b32 v{t}, 7, v{t}
    v_bfe_u32 v{t+2}, v{VL}, 4, 1
    v_lshl_add_u32 v{t}, v{t+2}, 3, v{t}
    v_add_u32 v{t}, s27, v{t}
    """)
    for nt in range(4):
        e(f"v_xor_b32 v{t+2}, {2*nt}, v{t+1}\nv_lshl_add_u32 v{VR+nt}, v{t+2}, 4, v{t}")
    for mt in range(2):
        for nt in range(4):
            a = g.acc(nt, mt); hr = HR + (mt*2 + (nt >> 1)) * 4 + (nt & 1) * 2
            e(f"""v_lshlrev_b32 v{t}, 16, v{hr}
            v_and_b32 v{t+1}, 0xffff0000, v{hr}
            v_lshlrev_b32 v{t+2}, 16, v{hr+1}
            v_and_b32 v{t+3}, 0xffff0000, v{hr+1}""")
            for r in range(4):
                e(f"v_add_f32 v{t+r}, v{t+r}, v{VMU+mt}")
            for r in range(4):
                e(f"v_fmac_f32 v{t+r}, v{a+r}, v{SQ+4*mt}")
            e(f"""v_cvt_pk_bf16_f32 v{a}, v{t}, v{t+1}
            v_cvt_pk_bf16_f32 v{a+1}, v{t+2}, v{t+3}
            ds_write_b64 v{VR+nt}, {vr(a,2)} offset:{mt*2048}""")
    e(f"""
    v_lshrrev_b32 v{t}, 3, v{VL}
    v_and_b32 v{t+1}, 7, v{VL}
    v_xor_b32 v{t+2}, v{t+1}, v{t}
    v_lshlrev_b32 v{t+2}, 4, v{t+2}
    v_lshl_add_u32 v{t+2}, v{t}, 7, v{t+2}
    v_add_u32 v{t+2}, s27, v{t+2}
    v_lshlrev_b32 v{t+1}, 4, v{t+1}
    v_lshl_add_u32 v{t+1}, v{t}, 11, v{t+1}
    s_lshl_b32 s28, s35, 16
    s_lshl_b32 s29, s23, 7
    s_add_u32 s28, s28, s29
    s_waitcnt lgkmcnt(0)
    """)
    for i in range(4):
        e(f"ds_read_b128 {vr(HR+4*i,4)}, v{t+2} offset:{i*1024}")
    for i in range(4):
        e(f"s_waitcnt lgkmcnt({3-i})\nbuffer_store_dwordx4 {vr(HR+4*i,4)}, v{t+1}, s[16:19], s28 offen")
        if i < 3:
            e(f"s_add_u32 s28, s28, {8*2048}")
    stamp_out(e, 5, 4, 0, VL)
    kernel_tail(e, name)
    return name, e.text(), descriptor(name, 80, g.na), (256, 256, LO + 16384)

def build(kernels):
    head = []
    for name, _, _, (grid, block, lds) in kernels:
        head.append(f"; @launch kernel={name} grid=({grid},1,1) block=({block},1,1) lds={lds}")
    out = "\n".join(head) + "\n"
    out += "; generated by dev/gen.py (hand-written instruction templates, unrolled by script)\n"
    out += '.amdgcn_target "amdgcn-amd-amdhsa--gfx950"\n'
    seen = set()
    for name, text, _, _ in kernels:
        if name not in seen:
            out += text
            seen.add(name)
    seen = set()
    for name, _, desc, _ in kernels:
        if name not in seen:
            out += desc
            seen.add(name)
    return out

def default_kernels():
    return [k_prep(), k_qkv(), k_attn(), k_oproj(), k_gateup(), k_down()]

if __name__ == "__main__":
    path = sys.argv[1] if len(sys.argv) > 1 else f"cdna_kernels/{NAME}.s"
    open(path, "w").write(build(default_kernels()))
    print("wrote", path)
```

```python
import sys, math
import gen
from gen import E, vr, ar, f2u, srd, spread, merge, descriptor, NAME
from gen import QF, KV, OF, HC, ACT, MUX, MU2, WB, SSQ

STAT = 0x2640000
gen.STAT = STAT
FLG = 0x2680000
gen.WS_BYTES = 0x2700000
WS_BYTES = gen.WS_BYTES
OOB = 0x7ffffff0
SPIN_MAX = 1 << 21

def stamp(e, i):
    if gen.PROFILE:
        e(f"s_memtime s[96:97]\ns_memrealtime s[98:99]\ns_waitcnt lgkmcnt(0)\ns_mov_b32 s{64+2*i}, s96\ns_mov_b32 s{65+2*i}, s98")
def stamp_out(e, kidx, n, ntot=None):
    if not gen.PROFILE:
        return
    e("s_waitcnt vmcnt(0)")
    stamp(e, n - 1)
    e(f"""s_mov_b64 exec, 1
    s_mov_b32 s10, 0x3000000
    s_lshl_b32 s3, s2, 2
    s_add_u32 s3, s3, s21
    s_lshl_b32 s3, s3, 7
    s_add_u32 s3, s3, {gen.PROF + 0x80000 + kidx * 131072}
    v_mov_b32 v0, 0""")
    for i in range(ntot or n):
        e(f"v_mov_b32 v2, s{64+2*i}\nv_mov_b32 v3, s{65+2*i}\nbuffer_store_dwordx2 v[2:3], v0, s[8:11], s3 offen offset:{8*i}\ns_nop 1")

class VQ:
    def __init__(self): self.q = []
    def add(self, tag): self.q.append(tag)
    def need(self, tags):
        idx = [i for i, t in enumerate(self.q) if t in tags]
        if not idx: return 63
        return min(63, len(self.q) - 1 - max(idx))
    def drain(self): self.q = []

def is_m0(line): return line.split(",")[0].endswith(" m0")
def fix_m0(lines):
    out = []
    for l in lines:
        if isinstance(l, str) and l.endswith(" lds") and out and isinstance(out[-1], str) and is_m0(out[-1]):
            out.append("s_nop 0")
        out.append(l)
    return out

def wait_text(w):
    _, n, lg = w
    s = []
    if n < 63: s.append(f"vmcnt({n})")
    if lg is not None: s.append(f"lgkmcnt({lg})")
    return "s_waitcnt " + " ".join(s) if s else "s_nop 0"

def roll(e, name, blocks, P, sloop):
    def shape(b): return [x if isinstance(x, str) else ("W", x[2]) for x in b]
    sh = [shape(b) for b in blocks]
    best = (1, 0)
    for j0 in range(len(blocks)):
        nl = 1
        while j0 + (nl + 1) * P <= len(blocks) and all(sh[j0 + nl * P + i] == sh[j0 + i] for i in range(P)):
            nl += 1
        if nl > best[0]: best = (nl, j0)
    nl, j0 = best
    def emit(b):
        for x in b: e(x if isinstance(x, str) else wait_text(x))
    if nl < 2:
        for b in blocks: emit(b)
        return (0, 0)
    for b in blocks[:j0]: emit(b)
    e(f"s_mov_b32 s{sloop}, {nl}\n.p2align 6\n{name}:")
    for i in range(P):
        b = list(blocks[j0 + i])
        for k, x in enumerate(b):
            if not isinstance(x, str):
                b[k] = ("W", min(blocks[j0 + it * P + i][k][1] for it in range(nl)), x[2])
        if i == P - 1:
            mi = [k for k, x in enumerate(b) if isinstance(x, str) and x.startswith("v_mfma")]
            last = mi[-1]
            assert not any(isinstance(x, str) and x.startswith("s_") and not x.startswith(("s_nop", "s_waitcnt", "s_barrier")) for x in b[last + 1:])
            b.insert(last + 1, f"s_cmp_lg_u32 s{sloop}, 0")
            b.insert(mi[-2] + 1, f"s_sub_u32 s{sloop}, s{sloop}, 1")
            b.append(f"s_cbranch_scc1 {name}")
        emit(b)
    for b in blocks[j0 + nl * P:]: emit(b)
    return (j0, nl)

def poll(e, label, load, test_ok, scnt):
    e(f"s_mov_b32 s{scnt}, 0\n{label}:")
    e(load)
    e(f"s_add_u32 s{scnt}, s{scnt}, 1\ns_waitcnt vmcnt(0)")
    e(test_ok)
    e(f"s_cmp_lt_u32 s{scnt}, {SPIN_MAX}\ns_cbranch_scc1 {label}\n{label}_ok:")

def bc(r):
    return vr(r & ~1, 2), r & 1

def front(e, pf=True, X={}):
    vq = VQ()
    STG = 40960; NS = X.get('NS', 3); KS = 32
    acc = lambda nt, mt: (nt * 4 + mt) * 4
    CS, CSO, ONE16 = 96, 108, 120
    VXD, VWD, VXR, VWR = 124, 128, 130, 138
    VST, VSW, VSA, VSV = 146, 147, 148, 149
    GR, MUA, MUV, RSV = 152, 156, 164, 180
    RAW, XF = 164, 180
    WOR = 216
    T = 224
    VL, VG, VG2, VPF, VPD, VFL, VAT, VNC = 240, 241, 242, 243, 244, 245, 246, 247
    SX, SW0, SW1, SW2, SSL, SNC, SMX, SMW = 24, 25, 26, 27, 28, 29, 31, 32
    wreg = lambda par, nt: (par * 6 + nt) * 4
    xreg = lambda par, mt: 48 + (par * 4 + mt) * 4
    e("s_load_dwordx16 s[48:63], s[0:1], 0\ns_load_dwordx4 s[36:39], s[0:1], 64")
    e(f"""
    v_lshrrev_b32 v{T}, 6, v0
    v_and_b32 v{VL}, 63, v0
    s_and_b32 s23, s2, 7
    v_readfirstlane_b32 s21, v{T}
    s_lshl_b32 s23, s23, 1
    s_lshr_b32 s3, s2, 7
    s_add_u32 s23, s23, s3
    s_bfe_u32 s22, s2, 0x40003
    s_lshr_b32 s33, s21, 1
    s_and_b32 s34, s21, 1
    v_lshlrev_b32 v{VG}, 4, v{VL}
    """)
    e(f"""
    s_lshl_b32 s3, s22, 7
    s_lshl_b32 s4, s23, 3
    s_add_u32 s3, s3, s4
    s_lshl_b32 s4, s21, 1
    s_add_u32 s3, s3, s4
    v_lshrrev_b32 v{T}, 5, v{VL}
    v_add_u32 v{T+1}, s3, v{T}
    v_and_b32 v{T}, 31, v{VL}
    v_lshlrev_b32 v{T+2}, 11, v{T+1}
    v_lshl_add_u32 v{T+2}, v{T}, 4, v{T+2}
    """)
    e(f"""
    v_lshrrev_b32 v{T+3}, 3, v{VL}
    s_lshl_b32 s3, s21, 5
    v_add_u32 v{T+4}, s3, v{T+3}
    v_lshlrev_b32 v{T+4}, 11, v{T+4}
    v_lshrrev_b32 v{T+5}, 4, v{VL}
    v_and_b32 v{T+6}, 7, v{VL}
    v_xor_b32 v{T+6}, v{T+6}, v{T+5}
    v_lshl_add_u32 v{VXD}, v{T+6}, 4, v{T+4}
    v_xor_b32 v{T+6}, 64, v{VXD}
    v_add_u32 v{VXD+1}, {16384 - 1024}, v{T+6}
    v_add_u32 v{VXD+2}, {32768 - 2048}, v{VXD}
    v_add_u32 v{VXD+3}, {49152 - 3072}, v{T+6}
    v_and_b32 v{T+4}, 3, v{T+3}
    v_lshrrev_b32 v{T+6}, 5, v{VL}
    v_lshl_add_u32 v{T+4}, v{T+6}, 3, v{T+4}
    s_lshl_b32 s3, s21, 4
    v_add_u32 v{T+4}, s3, v{T+4}
    v_mul_u32_u24 v{T+4}, 6144, v{T+4}
    v_bfe_u32 v{T+6}, v{VL}, 1, 2
    v_xor_b32 v{T+6}, v{T+6}, v{T+5}
    v_lshl_add_u32 v{T+4}, v{T+6}, 5, v{T+4}
    v_and_b32 v{T+6}, 1, v{VL}
    v_lshl_add_u32 v{VWD}, v{T+6}, 4, v{T+4}
    v_add_u32 v{VWD+1}, {4*6144 - 1024}, v{VWD}
    s_lshl_b32 s{SX}, s22, 18
    s_lshl_b32 s{SW0}, s23, 7
    s_add_u32 s{SW1}, s{SW0}, 2048
    s_add_u32 s{SW2}, s{SW0}, 4096
    s_lshl_b32 s{SMX}, s21, 12
    s_lshl_b32 s{SMW}, s21, 11
    s_add_u32 s{SMW}, s{SMW}, 16384
    """)
    e("s_waitcnt lgkmcnt(0)")
    srd(e, 16, 48, 49, 0x400000); srd(e, 12, 50, 51, 0x600000); srd(e, 8, 38, 39, WS_BYTES); srd(e, 40, 36, 37, 256)
    def dma_half(st, half):
        slot = st % NS; out = []
        if half == 0:
            out.append((f"s_add_u32 m0, s{SMX}, {slot*STG}", None))
            for i in range(4):
                out.append((f"buffer_load_dwordx4 v{VXD+i}, s[16:19], s{SX} offen offset:{1024*i} lds", ("w", st)))
        for seg in ((0,) if half == 0 else (1, 2)):
            out.append((f"s_add_u32 m0, s{SMW}, {slot*STG + seg*8192}", None))
            for i in range(2):
                out.append((f"buffer_load_dwordx4 v{VWD+i}, s[12:15], s{SW0+seg} offen offset:{1024*i} lds", ("w", st)))
        if half == 1:
            out += [(f"s_add_u32 s{SX}, s{SX}, 128", None)] + [(f"s_add_u32 s{r}, s{r}, {64*6144}", None) for r in (SW0, SW1, SW2)]
        return out
    def issue(items):
        lines = []
        for l, tag in items:
            lines.append(l)
            if tag is not None: vq.add(tag)
        return lines
    e(f"""
    v_mov_b32 v{T+8}, {hex(OOB)}
    v_mov_b32 v{T+9}, 0
    v_cmp_eq_u32 vcc, 0, v0
    s_cmp_lg_u32 s2, 0
    s_nop 0
    v_cndmask_b32 v{VAT}, v{T+8}, v{T+9}, vcc
    s_cbranch_scc1 tag_done
    s_memrealtime s[4:5]
    s_waitcnt lgkmcnt(0)
    s_or_b32 s4, s4, 1
    v_mov_b32 v{VNC}, s4
    buffer_store_dword v{VNC}, v{VAT}, s[40:43], 0 offen sc1
    tag_done:
    """)
    pro = []
    for st in range(NS - 1): pro += dma_half(st, 0) + dma_half(st, 1)
    e.ext(fix_m0(issue(pro)))
    ln_loads = [(f"buffer_load_dwordx4 {vr(RAW+4*i,4)}, v{T+2}, s[16:19], 0 offen offset:{512*i}", ("ln", 0)) for i in range(4)] + \
               [(f"buffer_load_dword v{VNC}, v{T+9}, s[40:43], 0 offen sc1", ("ln", 0))]
    if X.get('lnload') is None: e.ext(issue(ln_loads))
    e.ext(fix_m0(issue(dma_half(NS - 1, 0))))
    touch = []
    if X.get('touch'):
        n = len(X['touch']); per = -(-(1024 - NS * 64) * 48 // (n * 1024))
        e(f"""s_lshl_b32 s3, s2, 2
        s_add_u32 s3, s3, s21
        s_mul_i32 s3, s3, {per}
        v_add_u32 v{VPF}, s3, v{VL}
        v_lshlrev_b32 v{VPF}, 7, v{VPF}
        v_add_u32 v{VPF}, {NS*64*6144}, v{VPF}
        v_cmp_gt_u32 vcc, {per}, v{VL}
        v_mov_b32 v{VPD}, 0x70000000
        s_nop 0
        v_cndmask_b32 v{VPF}, v{VPD}, v{VPF}, vcc""")
        touch = [(f"buffer_load_dword v{VPD}, v{VPF}, s[12:15], 0 offen", ("pf", 0)), (f"v_add_u32 v{VPF}, {per*1024*128}, v{VPF}", None)]
    if not X.get('notouch'):
        e(f"s_lshl_b32 s3, s2, 8\nv_add_u32 v{T+3}, s3, v0\nv_lshlrev_b32 v{T+3}, 7, v{T+3}\nv_add_u32 v{T+3}, {NS*64*6144}, v{T+3}")
        e.ext(issue([(f"buffer_load_dword v{VPD}, v{T+3}, s[12:15], 0 offen", ("pf", 0))]))
    e(f"""
    v_and_b32 v{T+3}, 15, v{VL}
    s_lshl_b32 s3, s33, 6
    v_add_u32 v{T+4}, s3, v{T+3}
    v_lshlrev_b32 v{T+4}, 7, v{T+4}
    v_lshrrev_b32 v{T+6}, 1, v{T+3}
    v_xor_b32 v{T+6}, v{T+6}, v{T+5}
    v_lshl_add_u32 v{VXR}, v{T+6}, 4, v{T+4}
    v_xor_b32 v{VXR+1}, 64, v{VXR}
    v_bfe_u32 v{T+4}, v{VL}, 2, 3
    v_lshrrev_b32 v{T+6}, 1, v{T+4}
    v_lshrrev_b32 v{T+7}, 5, v{VL}
    v_lshl_add_u32 v{T+4}, v{T+7}, 4, v{T+4}
    v_lshlrev_b32 v{T+4}, 7, v{T+4}
    v_and_b32 v{T+7}, 3, v{VL}
    v_lshl_add_u32 v{T+4}, v{T+7}, 3, v{T+4}
    v_add_u32 v{T+4}, 16384, v{T+4}
    s_lshl_b32 s3, s34, 1
    s_add_u32 s3, s3, s33
    v_xor_b32 v{T+6}, s3, v{T+6}
    v_lshl_add_u32 v{VWR}, v{T+6}, 5, v{T+4}
    v_xor_b32 v{VWR+1}, 32, v{VWR}
    """)
    for s in range(1, NS):
        for k in range(2):
            e(f"v_add_u32 v{VXR+2*s+k}, {s*STG}, v{VXR+k}\nv_add_u32 v{VWR+2*s+k}, {s*STG}, v{VWR+k}")
    LS = NS * STG if NS < 4 else 0
    LQ = STG
    e(f"""
    s_lshl_b32 s3, s22, 13
    s_lshl_b32 s4, s33, 12
    s_add_u32 s3, s3, s4
    s_add_u32 s46, s3, {STAT}
    v_lshrrev_b32 v{T+4}, 1, v{VL}
    v_lshlrev_b32 v{T+4}, 7, v{T+4}
    v_and_b32 v{T+6}, 1, v{VL}
    v_lshl_add_u32 v{VST}, v{T+6}, 4, v{T+4}
    s_lshl_b32 s3, s21, 12
    s_add_u32 s3, s3, {LS}
    v_lshl_add_u32 v{VSW}, v{VL}, 2, s3
    v_lshl_add_u32 v{VSA}, v{T+3}, 2, s3
    v_lshl_add_u32 v{VSV}, v{T+5}, 4, s3
    v_mov_b32 v{ONE16}, 0x3f803f80
    v_mov_b32 v{ONE16+1}, 0x3f803f80
    v_mov_b32 v{ONE16+2}, 0x3f803f80
    v_mov_b32 v{ONE16+3}, 0x3f803f80
    s_lshl_b32 s35, s23, 1
    s_add_u32 s35, s35, s34
    """)
    emain = e
    e = E()
    e(f"v_readfirstlane_b32 s{SNC}, v{VNC}\ns_cmp_lg_u32 s{SNC}, 0\ns_cbranch_scc1 tagwait_ok")
    poll(e, "tagwait", f"buffer_load_dword v{VNC}, v{T+9}, s[40:43], 0 offen sc1",
         f"v_readfirstlane_b32 s{SNC}, v{VNC}\ns_cmp_lg_u32 s{SNC}, 0\ns_cbranch_scc1 tagwait_ok", 4)
    for r in range(16):
        e(f"v_lshlrev_b32 v{XF+2*r}, 16, v{RAW+r}\nv_and_b32 v{XF+2*r+1}, 0xffff0000, v{RAW+r}")
    def red32(v, t):
        for sh in (8, 4, 2, 1):
            e(f"s_nop 1\nv_add_f32_dpp v{v}, v{v}, v{v} row_ror:{sh} row_mask:0xf bank_mask:0xf")
        e(f"v_mov_b32 v{t}, v{v}\ns_nop 1\nv_permlane16_swap_b32 v{v}, v{t}\nv_add_f32 v{v}, v{v}, v{t}")
    A = T + 12
    e(f"v_pk_add_f32 {vr(A,2)}, {vr(XF,2)}, {vr(XF+2,2)}")
    for r in range(2, 16):
        e(f"v_pk_add_f32 {vr(A,2)}, {vr(A,2)}, {vr(XF+2*r,2)}")
    e(f"v_add_f32 v{A}, v{A}, v{A+1}")
    red32(A, A + 1)
    e(f"v_mul_f32 v{A}, {hex(f2u(1/1024))}, v{A}")
    for r in range(16):
        e(f"v_pk_add_f32 {vr(XF+2*r,2)}, {vr(XF+2*r,2)}, {vr(A,2)} op_sel_hi:[1,0] neg_lo:[0,1] neg_hi:[0,1]")
    e(f"v_pk_mul_f32 {vr(A+2,2)}, {vr(XF,2)}, {vr(XF,2)}")
    for r in range(1, 16):
        e(f"v_pk_fma_f32 {vr(A+2,2)}, {vr(XF+2*r,2)}, {vr(XF+2*r,2)}, {vr(A+2,2)}")
    e(f"v_add_f32 v{A+2}, v{A+2}, v{A+3}")
    red32(A + 2, A + 3)
    e(f"""
    v_mov_b32 v{A+1}, {hex(f2u(1e-5))}
    v_fmac_f32 v{A+1}, {hex(f2u(1/1024))}, v{A+2}
    v_rsq_f32 v{A+1}, v{A+1}
    v_lshrrev_b32 v{T+4}, 1, v{T+1}
    v_lshlrev_b32 v{T+4}, 7, v{T+4}
    v_and_b32 v{T+6}, 1, v{T+1}
    v_lshl_add_u32 v{T+4}, v{T+6}, 4, v{T+4}
    v_cmp_eq_u32 vcc, 0, v{T}
    v_mov_b32 v{A+2}, v{VNC}
    v_mov_b32 v{A+3}, 0
    v_cndmask_b32 v{T+4}, v{T+8}, v{T+4}, vcc
    s_mov_b32 s3, {STAT}
    """)
    ln_block = [l.strip() for l in e.l]
    ln_store = (f"buffer_store_dwordx4 {vr(A,4)}, v{T+4}, s[8:11], s3 offen sc1", ("st", 0))
    e = emain
    def reads(j):
        slot, kk, par = (j // 2) % NS, j & 1, j & 1
        xr = [f"ds_read_b128 {ar(xreg(par, mt),4)}, v{VXR + 2*slot + kk} offset:{mt*2048}" for mt in range(4)]
        wr = []
        for nt in range(6):
            off = (nt >> 1) * 8192 + kk * 4096
            v = VWR + 2 * slot + (nt & 1); d = wreg(par, nt)
            wr += [f"ds_read_b64_tr_b16 {ar(d,2)}, v{v} offset:{off}", f"ds_read_b64_tr_b16 {ar(d+2,2)}, v{v} offset:{off+1024}"]
        return wr[:2] + xr + wr[2:]
    e(f"s_waitcnt vmcnt({vq.need({('w', 0)})})\ns_barrier")
    stamp(e, 1)
    e.ext(reads(0))
    extra_vm = {}; extra_need = {}; extra_post = {}; extra_head = {}
    JLN = X.get('lnstep', 2 * NS - 3)
    if X.get('lnload') is not None:
        for i, j in enumerate(X['lnload']): extra_vm.setdefault(j, []).append(ln_loads[i])
        extra_vm[X['lnload'][-1]].append(ln_loads[4])
    for j in X.get('touch', []): extra_vm.setdefault(j, []).extend(touch)
    gr_load = f"buffer_load_dwordx4 {vr(GR,4)}, v{VST}, s[8:11], s46 offen sc1"
    extra_vm[24] = [(gr_load, ("gr", 0))]
    extra_need[27] = {("gr", 0)}
    chk = E()
    test = f"v_cmp_ne_u32 vcc, s{SNC}, v{GR+2}\ns_cbranch_vccz statwait_ok"
    chk(test)
    poll(chk, "statwait", gr_load, test, 4)
    extra_head[27] = [l.strip() for l in chk.l]
    extra_post[27] = [f"ds_write_b32 v{VSW}, v{GR}", f"ds_write_b32 v{VSW}, v{GR+1} offset:256"]
    extra_post[28] = [f"ds_read2_b32 {vr(MUA+2*mt,2)}, v{VSA} offset0:{16*mt} offset1:{64+16*mt}" for mt in range(4)]
    extra_post[29] = [f"ds_read_b128 {vr(MUV+4*mt,4)}, v{VSV} offset:{64*mt}" for mt in range(4)]
    extra_post[30] = [f"ds_read_b128 {vr(RSV+4*mt,4)}, v{VSV} offset:{256+64*mt}" for mt in range(4)]
    extra_vm[29] = [("s_lshl_b32 s3, s2, 2", None), ("s_add_u32 s3, s3, s21", None), ("s_lshl_b32 s3, s3, 11", None),
                    ("s_mov_b32 s12, s52", None), ("s_mov_b32 s13, s53", None), ("s_mov_b32 s14, 0x200000", None),
                    (f"buffer_load_dwordx4 {vr(WOR,4)}, v{VG}, s[12:15], s3 offen", ("wo", 0)),
                    (f"buffer_load_dwordx4 {vr(WOR+4,4)}, v{VG}, s[12:15], s3 offen offset:1024", ("wo", 0))]
    blocks = []
    for j in range(KS):
        par = j & 1
        tags = set(extra_need.get(j, ()))
        bar = (j & 1) and j + 1 < KS
        if bar: tags.add(("w", (j + 1) // 2))
        b = []
        if j == JLN:
            b += [("W", vq.need({("ln", 0)}), None)] + ln_block + issue([ln_store])
        b += [("W", vq.need(tags), 0)]
        if bar: b.append("s_barrier")
        b += extra_head.get(j, [])
        if j in X.get('stamps', []):
            tmp = E(); stamp(tmp, 7 + X['stamps'].index(j)); b += [l.strip() for l in tmp.l]
        mf = []
        for nt in range(6):
            w = ar(wreg(par, nt), 4)
            for mt in (range(4) if nt % 2 == 0 else range(3, -1, -1)):
                x = ar(xreg(par, mt), 4); d = vr(acc(nt, mt), 4)
                a_, b_ = (x, w) if nt >= 4 else (w, x)
                mf.append(f"v_mfma_f32_16x16x32_bf16 {d}, {a_}, {b_}, {d if j else 0}")
            if nt % 2 == 0:
                d = vr(CS + 2 * nt, 4); o = vr(ONE16, 4)
                a_, b_ = (o, w) if nt >= 4 else (w, o)
                mf.append(f"v_mfma_f32_16x16x32_bf16 {d}, {a_}, {b_}, {d if j else 0}")
        rd = reads(j + 1) if j + 1 < KS else []
        vm = []
        st = (j - 1) // 2 + NS if j & 1 else (j - 2) // 2 + NS
        if st < KS // 2 and not X.get('nodma'): vm += dma_half(st, 0 if j & 1 else 1)
        if X.get('noread'): rd = []
        vm += extra_vm.get(j, [])
        fill = merge(rd, issue(vm))
        if j in extra_post: fill = merge(fill, extra_post[j]) if fill else extra_post[j]
        b += fix_m0(spread(mf, fill, X.get('frac', 0.85) if j + 1 < KS else 1.0))
        blocks.append(b)
    roll(e, "qkv_loop", blocks, 2 * NS, 20)
    stamp(e, 2)
    c = f2u(math.log2(math.e) / math.sqrt(32))
    RQ = T
    e(f"""
    v_lshl_add_u32 v{T+4}, v{VL}, 4, 0
    s_lshl_b32 s3, s21, 12
    s_add_u32 s3, s3, {LS + 1024}
    v_add_u32 v{T+5}, s3, v{T+4}
    s_xor_b32 s3, s21, 2
    s_lshl_b32 s3, s3, 12
    s_add_u32 s3, s3, {LS + 1024}
    v_add_u32 v{T+6}, s3, v{T+4}
    """)
    for i in range(3):
        e(f"ds_write_b128 v{T+5}, {vr(CS+4*i,4)} offset:{i*1024}")
    for mt in range(4):
        e(f"v_mul_f32 v{RQ+mt}, {hex(c)}, v{MUA+2*mt+1}")
    e(f"""
    s_lshl_b32 s3, s35, 18
    s_add_u32 s35, s3, {KV}
    s_lshl_b32 s3, s33, 13
    s_add_u32 s35, s35, s3
    s_lshl_b32 s{SSL}, s22, 14
    s_add_u32 s24, s35, s{SSL}
    v_add_u32 v{VG2}, 4096, v{VG}
    """)
    def ln_rows(nt, mt, rs):
        a = acc(nt, mt); mu, mo = bc(MUA + 2 * mt); r_, ro = bc(rs)
        cs = (CSO if nt & 1 else CS) + 4 * (nt >> 1)
        for p in range(2):
            e(f"v_pk_fma_f32 {vr(a+2*p,2)}, {vr(cs+2*p,2)}, {mu}, {vr(a+2*p,2)} op_sel:[0,{mo},0] op_sel_hi:[1,{mo},1] neg_lo:[0,1,0] neg_hi:[0,1,0]")
        for p in range(2):
            e(f"v_pk_mul_f32 {vr(a+2*p,2)}, {vr(a+2*p,2)}, {r_} op_sel:[0,{ro}] op_sel_hi:[1,{ro}]")
    def ln_cols(nt, mt):
        a = acc(nt, mt); cs, co = bc((CSO if nt & 1 else CS) + 8)
        for p in range(2):
            e(f"v_pk_fma_f32 {vr(a+2*p,2)}, {vr(MUV+4*mt+2*p,2)}, {cs}, {vr(a+2*p,2)} op_sel:[0,{co},0] op_sel_hi:[1,{co},1] neg_lo:[0,1,0] neg_hi:[0,1,0]")
        for p in range(2):
            e(f"v_pk_mul_f32 {vr(a+2*p,2)}, {vr(a+2*p,2)}, {vr(RSV+4*mt+2*p,2)}")
    def pack(nt, mt):
        a, b = acc(nt, mt), acc(nt + 1, mt)
        e(f"""v_cvt_pk_bf16_f32 v{a}, v{a}, v{a+1}
        v_cvt_pk_bf16_f32 v{a+1}, v{a+2}, v{a+3}
        v_cvt_pk_bf16_f32 v{a+2}, v{b}, v{b+1}
        v_cvt_pk_bf16_f32 v{a+3}, v{b+2}, v{b+3}""")
    S = [0, 16]; Pp = [32, 40]; NM = [48, 64, 80, 96]; O = [112, 128, 144, 160]; U = 176
    KR = lambda t: 16 * (t & 3)
    VR_ = lambda t: 16 * (t & 3) + 8
    Q = [64, 72, 80, 88]; L = [96, 100, 104, 108]; ONE = 112
    def unswap(nt, label):
        e(f"s_cmp_eq_u32 s33, 0\ns_cbranch_scc1 {label}")
        for n in nt:
            for mt in range(4):
                a = acc(n, mt)
                e(f"v_swap_b32 v{a}, v{a+2}\nv_swap_b32 v{a+1}, v{a+3}")
        e(f"{label}:\ns_nop 1")
    e("s_waitcnt lgkmcnt(0)\ns_barrier")
    for i in range(3):
        e(f"ds_read_b128 {vr(CSO+4*i,4)}, v{T+6} offset:{i*1024}")
    for mt in range(4):
        ln_rows(2, mt, MUA + 2*mt + 1); ln_cols(4, mt)
    e("s_waitcnt lgkmcnt(0)")
    for mt in range(4):
        ln_rows(3, mt, MUA + 2*mt + 1); pack(2, mt)
        ln_cols(5, mt); pack(4, mt)
    unswap((2, 4), "unswap_kv")
    for Tt in range(2):
        vg = VG2 if Tt else VG
        a, b = acc(2, 2*Tt), acc(2, 2*Tt + 1)
        for r in range(4): e(f"v_permlane16_swap_b32 v{a+r}, v{b+r}")
        e.ext(issue([(f"buffer_store_dwordx4 {vr(acc(2, 2*Tt+s),4)}, v{vg}, s[8:11], s24 offen offset:{s*1024} sc1", ("kv", 0)) for s in range(2)]))
        for sw in ("16", "32"):
            for s in range(2):
                a = acc(4, 2*Tt + s)
                for p in range(2): e(f"v_permlane{sw}_swap_b32 v{a+p}, v{a+2+p}")
        e.ext(issue([(f"buffer_store_dwordx4 {vr(acc(4, 2*Tt+s),4)}, v{vg}, s[8:11], s24 offen offset:{2048 + s*1024} sc1", ("kv", 0)) for s in range(2)]))
    for mt in range(4):
        ln_rows(0, mt, RQ + mt); ln_rows(1, mt, RQ + mt); pack(0, mt)
    unswap((0,), "unswap_q")
    e(f"s_lshl_b32 s3, s21, 12\ns_add_u32 s3, s3, {LQ}\nv_add_u32 v{T+4}, s3, v{VG}\ns_xor_b32 s3, s21, 2\ns_lshl_b32 s3, s3, 12\ns_add_u32 s3, s3, {LQ}\nv_add_u32 v{T+5}, s3, v{VG}")
    for Tt in range(2):
        a, b = acc(0, 2*Tt), acc(0, 2*Tt + 1)
        for r in range(4): e(f"v_permlane16_swap_b32 v{a+r}, v{b+r}")
    for i in range(4):
        e(f"ds_write_b128 v{T+4}, {vr(acc(0, i),4)} offset:{i*1024}")
    for Tt in range(2):
        for r in range(8):
            e(f"v_accvgpr_write_b32 a{KR(Tt)+r}, v{acc(2, 2*Tt)+r}\nv_accvgpr_write_b32 a{VR_(Tt)+r}, v{acc(4, 2*Tt)+r}")
    for r in range(16):
        e(f"v_accvgpr_write_b32 a{Q[0]+r}, v{r}")
    e("s_waitcnt lgkmcnt(0)\ns_barrier")
    for i in range(4):
        e(f"ds_read_b128 {ar(Q[2]+4*i,4)}, v{T+5} offset:{i*1024}")
    e(f"""
    v_and_b32 v{U}, 3, v{VL}
    v_bfe_u32 v{U+1}, v{VL}, 2, 1
    v_bfe_u32 v{U+2}, v{VL}, 4, 1
    v_xor_b32 v{U+1}, v{U+1}, v{U+2}
    v_or_b32 v{U}, v{U}, v{U+1}
    v_mov_b32 v{U+1}, 0x3f803f80
    v_cmp_eq_u32 vcc, 0, v{U}
    s_nop 1
    v_cndmask_b32 v{U}, 0, v{U+1}, vcc
    """)
    for r in range(4): e(f"v_accvgpr_write_b32 a{ONE+r}, v{U}")
    def qk(q, t, s, c):
        return [f"v_mfma_f32_32x32x16_bf16 {vr(s,16)}, {ar(KR(t),4)}, {ar(Q[q],4)}, {c}",
                f"v_mfma_f32_32x32x16_bf16 {vr(s,16)}, {ar(KR(t)+4,4)}, {ar(Q[q]+4,4)}, {vr(s,16)}"]
    def pv(q, t, p, first=False):
        o, l = vr(O[q], 16), ar(L[q], 4)
        return [f"v_mfma_f32_32x32x16_bf16 {o}, {ar(VR_(t),4)}, {vr(p,4)}, {0 if first else o}",
                f"v_mfma_f32_32x32x16_bf16 {o}, {ar(VR_(t)+4,4)}, {vr(p+4,4)}, {o}",
                f"v_mfma_f32_16x16x32_bf16 {l}, {ar(ONE,4)}, {vr(p,4)}, {0 if first else l}",
                f"v_mfma_f32_16x16x32_bf16 {l}, {ar(ONE,4)}, {vr(p+4,4)}, {l}"]
    def tile_max(s, m, init):
        if init:
            e(f"v_max3_f32 v{m}, v{s}, v{s+1}, v{s+2}\nv_max_f32 v{m}, v{m}, v{s+3}")
        else:
            e(f"v_max3_f32 v{m}, v{s}, v{s+1}, v{m}\nv_max3_f32 v{m}, v{s+2}, v{s+3}, v{m}")
        for r in range(4, 16, 2):
            e(f"v_max3_f32 v{m}, v{s+r}, v{s+r+1}, v{m}")
    def set_negmax():
        for q in range(4): e(f"v_mov_b32 v{U+4+q}, v{U+q}")
        e("s_nop 1")
        for q in range(4): e(f"v_permlane32_swap_b32 v{U+q}, v{U+4+q}")
        for q in range(4): e(f"v_max_f32 v{U+q}, v{U+q}, v{U+4+q}")
        for q in range(4):
            for r in range(0, 16, 2):
                s_, o_ = bc(U + q)
                e(f"v_pk_mul_f32 {vr(NM[q]+r,2)}, {s_}, -1.0 op_sel:[{o_},0] op_sel_hi:[{o_},0]")
    e("s_nop 1")
    for q in range(2): e.ext(qk(q, 0, O[q], "0"))
    e("s_waitcnt lgkmcnt(0)")
    for q in range(2, 4): e.ext(qk(q, 0, O[q], "0"))
    if pf:
        e(f"""s_cmp_eq_u32 s21, 1
        s_cselect_b32 s44, s58, s56
        s_cselect_b32 s45, s59, s57
        s_cmp_eq_u32 s21, 2
        s_cselect_b32 s44, s60, s44
        s_cselect_b32 s45, s61, s45
        s_mov_b32 s46, {1024*7168}
        s_cmp_eq_u32 s21, 3
        s_cselect_b32 s44, s52, s44
        s_cselect_b32 s45, s53, s45
        s_cselect_b32 s46, 0x200000, s46
        s_mov_b32 s47, 0x00020000
        s_lshl_b32 s3, s2, 4
        v_and_b32 v{VPF}, 15, v{VL}
        v_add_u32 v{VPF}, s3, v{VPF}
        v_lshlrev_b32 v{VPF}, 7, v{VPF}
        v_cmp_gt_u32 vcc, 16, v{VL}
        v_mov_b32 v{VPD}, {hex(OOB - (16 << 19))}
        s_nop 0
        v_cndmask_b32 v{VPF}, v{VPD}, v{VPF}, vcc
        """)
    else:
        e("s_nop 15")
    for q in range(4): tile_max(O[q], U + q, True)
    set_negmax()
    e("s_nop 1")
    e.ext(qk(0, 0, S[0], vr(NM[0], 16)))
    e(f"""
    s_lshl_b32 s3, s23, 4
    s_add_u32 s4, s3, s22
    s_lshl_b32 s4, s4, 7
    s_add_u32 s25, s4, {FLG}
    s_lshl_b32 s3, s3, 7
    s_add_u32 s26, s3, {FLG}
    v_and_b32 v{VFL}, 15, v{VL}
    v_lshlrev_b32 v{VFL}, 7, v{VFL}
    s_nop 5
    """)
    stamp(e, 3)
    def phase(t, q, extra):
        s, p = S[q & 1], Pp[q & 1]
        nt_, nq = (t, q + 1) if q < 3 else (t + 1, 0)
        pt_, pq = (t, q - 1) if q > 0 else (t - 1, 3)
        mf = (qk(nq, nt_, S[nq & 1], vr(NM[nq], 16)) if nt_ < 32 else [None, None]) + \
             (pv(pq, pt_, Pp[pq & 1], pt_ == 0) if pt_ >= 0 else [None] * 4)
        ex = [f"v_exp_f32 v{s+r}, v{s+r}" for r in range(16)]
        cv = [f"v_cvt_pk_bf16_f32 v{p+r}, v{s+2*r}, v{s+2*r+1}" for r in range(8)]
        groups = [ex[0:3], ex[3:6], [ex[6], ex[7], cv[0], cv[1]], [ex[8], ex[9], cv[2], cv[3]], [ex[10]],
                  [ex[11], ex[12], ex[13], cv[4], ex[14], cv[5], ex[15], cv[6], cv[7]]]
        out = []
        for i in range(6):
            if mf[i]: out.append(mf[i])
            out += extra.get(i, [])
            out += groups[i]
        return out
    def kv_load(t, i):
        d = (KR(t), KR(t) + 4, VR_(t), VR_(t) + 4)[i]
        return (f"buffer_load_dwordx4 {ar(d,4)}, v{VG2 if t & 1 else VG}, s[8:11], s24 offen offset:{i*1024} {X.get('kvflag', 'sc1')}", ("kv", t))
    next_pair = [f"s_add_u32 s{SSL}, s{SSL}, 16384", f"s_and_b32 s{SSL}, s{SSL}, 0x3ffff", f"s_add_u32 s24, s35, s{SSL}"]
    for q in range(3): e.ext(phase(0, q, {}))
    e("s_waitcnt vmcnt(0)\ns_barrier")
    vq.drain()
    e(f"buffer_store_dword v{VNC}, v{VAT}, s[8:11], s25 offen sc1")
    e.ext(phase(0, 3, {}))
    for q in range(3): e.ext(phase(1, q, {}))
    W6 = U + 8
    e(f"v_mov_b32 v{W6}, 0\nv_mov_b32 v{W6+1}, 0x3f803f80")
    for r in range(8):
        e(f"v_dot2c_f32_bf16 v{W6}, v{WOR+r}, v{W6+1}")
    e("s_nop 1")
    red32(W6, W6 + 1)
    e(f"""v_mov_b32 v{W6+1}, v{W6}
    s_lshl_b32 s3, s2, 2
    s_add_u32 s3, s3, s21
    v_permlane32_swap_b32 v{W6}, v{W6+1}
    v_add_f32 v{W6}, v{W6}, v{W6+1}
    v_mul_f32 v{W6}, {hex(f2u(1/1024))}, v{W6}
    v_cvt_pk_bf16_f32 v{W6+1}, v{W6}, v{W6}
    v_and_b32 v{W6+2}, 0xffff0000, v{W6+1}
    v_sub_f32 v{W6+2}, v{W6}, v{W6+2}
    v_cvt_pk_bf16_f32 v{W6+2}, v{W6+2}, v{W6+2}
    s_lshr_b32 s4, s3, 5
    s_lshl_b32 s4, s4, 7
    s_bfe_u32 s5, s3, 0x10004
    s_lshl_b32 s5, s5, 5
    s_add_u32 s4, s4, s5
    s_bfe_u32 s5, s3, 0x10002
    s_lshl_b32 s5, s5, 4
    s_add_u32 s4, s4, s5
    s_bfe_u32 s5, s3, 0x10003
    s_lshl_b32 s5, s5, 3
    s_add_u32 s4, s4, s5
    s_and_b32 s5, s3, 3
    s_lshl_b32 s5, s5, 1
    s_add_u32 s4, s4, s5
    s_add_u32 s4, s4, {WB}
    v_mov_b32 v{W6+3}, {hex(OOB)}
    v_cmp_eq_u32 vcc, 0, v{VL}
    v_mov_b32 v{W6+4}, 0
    s_nop 0
    v_cndmask_b32 v{W6+3}, v{W6+3}, v{W6+4}, vcc
    buffer_store_short v{W6+1}, v{W6+3}, s[8:11], s4 offen sc1
    buffer_store_short v{W6+2}, v{W6+3}, s[8:11], s4 offen offset:64 sc1
    """)
    poll(e, "kvwait", f"buffer_load_dword v{W6}, v{VFL}, s[8:11], s26 offen sc1",
         f"v_cmp_ne_u32 vcc, s{SNC}, v{W6}\ns_cbranch_vccz kvwait_ok", 4)
    e.ext(next_pair)
    e.ext(issue([kv_load(t, i) for t in (2, 3) for i in range(4)]))
    e.ext(next_pair)
    e.ext(issue([kv_load(4, i) for i in range(4)]))
    e(f"s_waitcnt vmcnt({vq.need({('kv', 2)})})")
    stamp(e, 4)
    e.ext(phase(1, 3, {}))
    blocks = []
    for t in range(2, 32):
        b = []
        for q in range(4):
            ex = {}
            if t + 3 < 32 or X.get('overrun', 1) and t < 30:
                ex[0] = issue([kv_load(t + 3, q)])
                if q == 3 and not t & 1:
                    ex[1] = next_pair[:1]; ex[2] = next_pair[1:2]; ex[3] = next_pair[2:]
            if pf and q == 3 and t & 1 and t < 30:
                ex[1] = issue([(f"buffer_load_dword v{VPD}, v{VPF}, s[44:47], 0 offen", ("pf", t))])
                ex[2] = [f"v_add_u32 v{VPF}, {1 << 19}, v{VPF}"]
            if q == 2 and t + 1 < 32:
                ex[5] = [("W", vq.need({("kv", t + 1)}), None)]
            b += phase(t, q, ex)
        blocks.append(b)
    roll(e, "attn_loop", blocks, 4, 20)
    e("s_nop 1")
    e.ext(pv(3, 31, Pp[1]))
    stamp(e, 5)
    e(f"s_nop 7\nv_mov_b32 v{U}, 0\nv_mov_b32 v{U+1}, 0")
    for q in range(4):
        for r in range(0, 16, 2):
            e(f"v_pk_fma_f32 {vr(U,2)}, {vr(O[q]+r,2)}, 0, {vr(U,2)} op_sel_hi:[1,0,1]")
    for q in range(4): e(f"v_accvgpr_read_b32 v{U+4+q}, a{L[q]}")
    e(f"""
    v_add_f32 v{U}, v{U}, v{U+1}
    v_add_f32 v{U+2}, v{U+4}, v{U+5}
    v_add_f32 v{U+3}, v{U+6}, v{U+7}
    v_add_f32 v{U}, v{U}, v{U+2}
    v_add_f32 v{U}, v{U}, v{U+3}
    v_mov_b32 v{U+1}, {hex(f2u(2.0**100))}
    v_cmp_nlt_f32 vcc, v{U}, v{U+1}
    s_cbranch_vccnz attn_slow
    attn_merge:
    """)
    e(f"""
    s_mul_i32 s3, s21, 9216
    v_add_u32 v{T}, s3, v{VG}
    s_xor_b32 s4, s21, 2
    s_mul_i32 s4, s4, 9216
    v_add_u32 v{T+1}, s4, v{VG}
    v_mov_b32 v{U+8}, v{U+6}
    v_mov_b32 v{U+9}, v{U+7}
    v_mov_b32 v{U+10}, v{NM[2]}
    v_mov_b32 v{U+11}, v{NM[3]}
    ds_write_b128 v{T}, {vr(U+8,4)} offset:8192
    """)
    for i in range(8):
        e(f"ds_write_b128 v{T}, {vr(O[2]+4*i,4)} offset:{i*1024}")
    e(f"""
    v_bfe_u32 v{T+4}, v{VL}, 4, 1
    v_lshlrev_b32 v{T+4}, 10, v{T+4}
    v_and_b32 v{T+5}, 15, v{VL}
    v_lshl_add_u32 v{T+4}, v{T+5}, 4, v{T+4}
    v_lshrrev_b32 v{T+5}, 5, v{VL}
    v_lshl_add_u32 v{T+4}, v{T+5}, 8, v{T+4}
    s_lshl_b32 s3, s22, 2
    s_lshl_b32 s4, s33, 1
    s_add_u32 s3, s3, s4
    s_lshl_b32 s3, s3, 16
    s_lshl_b32 s4, s23, 12
    s_add_u32 s3, s3, s4
    s_lshl_b32 s4, s34, 11
    s_add_u32 s3, s3, s4
    s_add_u32 s4, s3, {OF}
    s_add_u32 s5, s4, 65536
    s_waitcnt lgkmcnt(0)
    s_barrier
    ds_read_b128 {vr(U+8,4)}, v{T+1} offset:8192
    """)
    for i in range(8):
        e(f"ds_read_b128 {vr(O[2]+4*i,4)}, v{T+1} offset:{i*1024}")
    e("s_waitcnt lgkmcnt(8)")
    F = U + 12
    for q in range(2):
        e(f"""v_min_f32 v{U}, v{NM[q]}, v{U+10+q}
        v_sub_f32 v{U+1}, v{U}, v{NM[q]}
        v_sub_f32 v{U+2}, v{U}, v{U+10+q}
        v_exp_f32 v{U+1}, v{U+1}
        v_exp_f32 v{U+2}, v{U+2}
        s_nop 0
        v_mul_f32 v{U}, v{U+4+q}, v{U+1}
        v_fmac_f32 v{U}, v{U+8+q}, v{U+2}
        v_rcp_f32 v{U}, v{U}
        s_nop 0
        v_mul_f32 v{F+2*q}, v{U+1}, v{U}
        v_mul_f32 v{F+2*q+1}, v{U+2}, v{U}""")
    for q in range(2):
        for r in range(0, 16, 2):
            e(f"v_pk_mul_f32 {vr(O[q]+r,2)}, {vr(O[q]+r,2)}, {vr(F+2*q,2)} op_sel_hi:[1,0]")
    for q in range(2):
        e(f"s_waitcnt lgkmcnt({4 - 4*q})")
        for r in range(0, 16, 2):
            e(f"v_pk_fma_f32 {vr(O[q]+r,2)}, {vr(O[2+q]+r,2)}, {vr(F+2*q,2)}, {vr(O[q]+r,2)} op_sel:[0,1,0] op_sel_hi:[1,1,1]")
        for r in range(8):
            e(f"v_cvt_pk_bf16_f32 v{Pp[q]+r}, v{O[q]+2*r}, v{O[q]+2*r+1}")
        for ci in range(2):
            e(f"buffer_store_dwordx4 {vr(Pp[q]+4*ci,4)}, v{T+4}, s[8:11], s{4+q} offen offset:{ci*512} sc1")
    def slow(e2):
        nonlocal e
        keep = e; e = e2
        e("attn_slow:\ns_waitcnt vmcnt(0) lgkmcnt(0)")
        for q in range(4): e(f"v_mov_b32 v{U+q}, 0xff800000")
        e("s_mov_b32 s4, 0\nattn_slow_max:")
        e("s_lshr_b32 s3, s4, 1\ns_lshl_b32 s3, s3, 14\ns_and_b32 s5, s4, 1\ns_lshl_b32 s5, s5, 12\ns_add_u32 s3, s3, s5\ns_add_u32 s24, s35, s3")
        e.ext([kv_load(0, i)[0] for i in range(2)])
        e("s_waitcnt vmcnt(0)")
        for q in range(4): e.ext(qk(q, 0, O[q], "0"))
        e("s_nop 15")
        for q in range(4): tile_max(O[q], U + q, False)
        e("s_add_u32 s4, s4, 1\ns_cmp_lt_u32 s4, 32\ns_cbranch_scc1 attn_slow_max")
        set_negmax()
        for q in range(4):
            for r in range(16): e(f"v_mov_b32 v{O[q]+r}, 0")
            for r in range(4): e(f"v_accvgpr_write_b32 a{L[q]+r}, 0")
        e("s_mov_b32 s4, 0\nattn_slow_acc:")
        e("s_lshr_b32 s3, s4, 1\ns_lshl_b32 s3, s3, 14\ns_and_b32 s5, s4, 1\ns_lshl_b32 s5, s5, 12\ns_add_u32 s3, s3, s5\ns_add_u32 s24, s35, s3")
        e.ext([kv_load(0, i)[0] for i in range(4)])
        e("s_waitcnt vmcnt(0)")
        for q in range(4):
            e.ext(qk(q, 0, S[0], vr(NM[q], 16)))
            e("s_nop 15")
            for r in range(16): e(f"v_exp_f32 v{S[0]+r}, v{S[0]+r}")
            e("s_nop 0")
            for r in range(8): e(f"v_cvt_pk_bf16_f32 v{Pp[0]+r}, v{S[0]+2*r}, v{S[0]+2*r+1}")
            e("s_nop 1")
            e.ext(pv(q, 0, Pp[0]))
        e("s_nop 15\ns_add_u32 s4, s4, 1\ns_cmp_lt_u32 s4, 32\ns_cbranch_scc1 attn_slow_acc")
        for q in range(4): e(f"v_accvgpr_read_b32 v{U+4+q}, a{L[q]}")
        e("s_branch attn_merge")
        e = keep
    return slow

def k_front(pf=True, X={}):
    e = E(); name = "front_kernel"
    e(f".text\n.globl {name}\n.p2align 8\n.type {name},@function\n{name}:")
    e(f"s_cmp_ge_u32 s2, 256\ns_cbranch_scc1 {name}_end")
    stamp(e, 0)
    slow = front(e, pf, X)
    stamp_out(e, 0, 7, 7 + len(X.get('stamps', [])))
    e("s_endpgm")
    slow(e)
    e(f"{name}_end:\ns_endpgm")
    return name, e.text(), descriptor(name, 256, 116, 102), (256, 256, min(163840, X.get('NS', 3) * 40960 + 16384))

def default_kernels():
    return [k_front(), gen.k_oproj(), gen.k_gateup(), gen.k_down()]

if __name__ == "__main__":
    path = sys.argv[1] if len(sys.argv) > 1 else f"cdna_kernels/{NAME}.s"
    open(path, "w").write(gen.build(default_kernels()))
    print("wrote", path)
```

```python
import gen, gen2
from gen import *
def k_touch(name, bufs, stride, code=False):
    e = E()
    kernel_head(e, name, 256)
    e("s_load_dwordx16 s[48:63], s[0:1], 0\ns_load_dwordx4 s[36:39], s[0:1], 64")
    e(f"s_lshl_b32 s3, s2, 8\nv_add_u32 v1, s3, v0\ns_mov_b32 s4, {stride}\nv_mul_lo_u32 v1, v1, s4\ns_waitcnt lgkmcnt(0)")
    for i, (lo, n) in enumerate(bufs):
        srd(e, 8, lo, lo + 1, n)
        rounds = -(-n // (65536 * stride))
        e("v_mov_b32 v2, v1")
        for r in range(rounds):
            e(f"buffer_load_dword v{4+i}, v2, s[8:11], 0 offen\nv_add_u32 v2, {65536*stride}, v2")
    if code:
        e(f"""s_getpc_b64 s[10:11]
        v_lshlrev_b32 v2, 6, v0
        s_and_b32 s5, s2, 0xf8
        s_lshl_b32 s5, s5, 8
        s_min_u32 s5, s5, 0xb000
        v_mov_b32 v3, 0
        v_cmp_gt_u32 vcc, 32, v0
        s_and_saveexec_b64 s[12:13], vcc
        v_add_u32 v2, s5, v2
        global_load_dword v20, v2, s[10:11]
        s_mov_b64 exec, s[12:13]""")
    e("s_waitcnt vmcnt(0)")
    kernel_tail(e, name)
    return name, e.text(), descriptor(name, 32, 0), (256, 256, 0)
def k_spin(name, n):
    e = E()
    kernel_head(e, name, 256)
    e(f"s_mov_b32 s3, {n}\nv_mov_b32 v4, 0\nv_mov_b32 v5, 0\nv_mov_b32 v6, 0\nv_mov_b32 v7, 0\n{name}_l:")
    for i in range(8): e("v_mfma_f32_16x16x32_bf16 v[8:11], v[4:7], v[4:7], v[8:11]")
    e(f"s_sub_u32 s3, s3, 1\ns_cmp_lg_u32 s3, 0\ns_cbranch_scc1 {name}_l")
    kernel_tail(e, name)
    return name, e.text(), descriptor(name, 32, 0), (256, 256, 0)
ALL = [(48, 0x400000), (50, 0x600000), (52, 0x200000), (56, 0x700000), (58, 0x700000), (60, 0x700000), (62, 0x400000), (38, 0x2700000)]
base = gen2.default_kernels()
open('x_tlb.s', 'w').write(build([k_touch("tlb_kernel", ALL, 4096)] + base))
open('x_data.s', 'w').write(build([k_touch("data_kernel", ALL[:2], 128)] + base))
open('x_code.s', 'w').write(build([k_touch("code_kernel", [], 128, True)] + base))
open('x_spin.s', 'w').write(build([k_spin("spin_kernel", 80)] + base))
open('x_front2.s', 'w').write(build([base[0]] + base))
```

```python
import sys, math
import gen
from gen import E, vr, ar, f2u, srd, spread, merge, descriptor, NAME
from gen import QF, KV, OF, HC, ACT, MUX, MU2, WB, SSQ

XCH = 0x0000000
STAT = 0x2640000
WB2 = 0x2660000
FLG = 0x2680000
F1, F2, F3, F4, F5 = FLG, FLG + 0x8000, FLG + 0x10000, FLG + 0x18000, FLG + 0x20000
gen.STAT = STAT
gen.WS_BYTES = 0x2700000
WS_BYTES = gen.WS_BYTES
VL, VG, VG2, VPF, VPD, VFL, VAT, VNC, VW0, VD3 = 240, 241, 242, 243, 244, 245, 246, 247, 248, 249
SNC = 29
OOB = 0x7ffffff0
SPIN_MAX = 1 << 21

def stamp(e, i):
    if gen.PROFILE:
        e(f"s_memtime s[96:97]\ns_memrealtime s[98:99]\ns_waitcnt lgkmcnt(0)\ns_mov_b32 s{64+2*i}, s96\ns_mov_b32 s{65+2*i}, s98")
def stamp_out(e, kidx, n, ntot=None):
    if not gen.PROFILE:
        return
    e("s_waitcnt vmcnt(0)")
    stamp(e, n - 1)
    e(f"""s_mov_b64 exec, 1
    s_mov_b32 s10, 0x3000000
    s_lshl_b32 s3, s2, 2
    s_add_u32 s3, s3, s21
    s_lshl_b32 s3, s3, 7
    s_add_u32 s3, s3, {gen.PROF + 0x80000 + kidx * 131072}
    v_mov_b32 v0, 0""")
    for i in range(ntot or n):
        e(f"v_mov_b32 v2, s{64+2*i}\nv_mov_b32 v3, s{65+2*i}\nbuffer_store_dwordx2 v[2:3], v0, s[8:11], s3 offen offset:{8*i}\ns_nop 1")

class VQ:
    def __init__(self): self.q = []
    def add(self, tag): self.q.append(tag)
    def need(self, tags):
        idx = [i for i, t in enumerate(self.q) if t in tags]
        if not idx: return 63
        return min(63, len(self.q) - 1 - max(idx))
    def drain(self): self.q = []

def is_m0(line): return line.split(",")[0].endswith(" m0")
def fix_m0(lines):
    out = []
    for l in lines:
        if isinstance(l, str) and l.endswith(" lds") and out and isinstance(out[-1], str) and is_m0(out[-1]):
            out.append("s_nop 0")
        out.append(l)
    return out

def wait_text(w):
    _, n, lg = w
    s = []
    if n < 63: s.append(f"vmcnt({n})")
    if lg is not None: s.append(f"lgkmcnt({lg})")
    return "s_waitcnt " + " ".join(s) if s else "s_nop 0"

def roll(e, name, blocks, P, sloop):
    def shape(b): return [x if isinstance(x, str) else ("W", x[2]) for x in b]
    sh = [shape(b) for b in blocks]
    best = (1, 0)
    for j0 in range(len(blocks)):
        nl = 1
        while j0 + (nl + 1) * P <= len(blocks) and all(sh[j0 + nl * P + i] == sh[j0 + i] for i in range(P)):
            nl += 1
        if nl > best[0]: best = (nl, j0)
    nl, j0 = best
    def emit(b):
        for x in b: e(x if isinstance(x, str) else wait_text(x))
    if nl < 2:
        for b in blocks: emit(b)
        return (0, 0)
    for b in blocks[:j0]: emit(b)
    e(f"s_mov_b32 s{sloop}, {nl}\n.p2align 6\n{name}:")
    for i in range(P):
        b = list(blocks[j0 + i])
        for k, x in enumerate(b):
            if not isinstance(x, str):
                b[k] = ("W", min(blocks[j0 + it * P + i][k][1] for it in range(nl)), x[2])
        if i == P - 1:
            mi = [k for k, x in enumerate(b) if isinstance(x, str) and x.startswith("v_mfma")]
            last = mi[-1]
            assert not any(isinstance(x, str) and x.startswith("s_") and not x.startswith(("s_nop", "s_waitcnt", "s_barrier")) for x in b[last + 1:])
            b.insert(last + 1, f"s_cmp_lg_u32 s{sloop}, 0")
            b.insert(mi[-2] + 1, f"s_sub_u32 s{sloop}, s{sloop}, 1")
            b.append(f"s_cbranch_scc1 {name}")
        emit(b)
    for b in blocks[j0 + nl * P:]: emit(b)
    return (j0, nl)

def poll(e, label, load, test_ok, scnt):
    e(f"s_mov_b32 s{scnt}, 0\n{label}:")
    e(load)
    e(f"s_add_u32 s{scnt}, s{scnt}, 1\ns_waitcnt vmcnt(0)")
    e(test_ok)
    e(f"s_cmp_lt_u32 s{scnt}, {SPIN_MAX}\ns_cbranch_scc1 {label}\n{label}_ok:")

def bc(r):
    return vr(r & ~1, 2), r & 1

def front(e, pf=True, X={}):
    vq = VQ()
    STG = 40960; NS = X.get('NS', 3); KS = 32
    acc = lambda nt, mt: (nt * 4 + mt) * 4
    CS, CSO, ONE16 = 96, 108, 120
    VXD, VWD, VXR, VWR = 124, 128, 130, 138
    VST, VSW, VSA, VSV = 146, 147, 148, 149
    GR, MUA, MUV, RSV = 152, 156, 164, 180
    RAW, XF = 164, 180
    WOR = 216
    T = 224
    SX, SW0, SW1, SW2, SSL, SMX, SMW = 24, 25, 26, 27, 28, 31, 32
    wreg = lambda par, nt: (par * 6 + nt) * 4
    xreg = lambda par, mt: 48 + (par * 4 + mt) * 4
    e("s_load_dwordx16 s[48:63], s[0:1], 0\ns_load_dwordx4 s[36:39], s[0:1], 64")
    e(f"""
    v_lshrrev_b32 v{T}, 6, v0
    v_and_b32 v{VL}, 63, v0
    s_and_b32 s23, s2, 7
    v_readfirstlane_b32 s21, v{T}
    s_lshl_b32 s23, s23, 1
    s_lshr_b32 s3, s2, 7
    s_add_u32 s23, s23, s3
    s_bfe_u32 s22, s2, 0x40003
    s_lshr_b32 s33, s21, 1
    s_and_b32 s34, s21, 1
    v_lshlrev_b32 v{VG}, 4, v{VL}
    """)
    e(f"""
    s_lshl_b32 s3, s22, 7
    s_lshl_b32 s4, s23, 3
    s_add_u32 s3, s3, s4
    s_lshl_b32 s4, s21, 1
    s_add_u32 s3, s3, s4
    v_lshrrev_b32 v{T}, 5, v{VL}
    v_add_u32 v{T+1}, s3, v{T}
    v_and_b32 v{T}, 31, v{VL}
    v_lshlrev_b32 v{T+2}, 11, v{T+1}
    v_lshl_add_u32 v{T+2}, v{T}, 4, v{T+2}
    """)
    e(f"""
    v_lshrrev_b32 v{T+3}, 3, v{VL}
    s_lshl_b32 s3, s21, 5
    v_add_u32 v{T+4}, s3, v{T+3}
    v_lshlrev_b32 v{T+4}, 11, v{T+4}
    v_lshrrev_b32 v{T+5}, 4, v{VL}
    v_and_b32 v{T+6}, 7, v{VL}
    v_xor_b32 v{T+6}, v{T+6}, v{T+5}
    v_lshl_add_u32 v{VXD}, v{T+6}, 4, v{T+4}
    v_xor_b32 v{T+6}, 64, v{VXD}
    v_add_u32 v{VXD+1}, {16384 - 1024}, v{T+6}
    v_add_u32 v{VXD+2}, {32768 - 2048}, v{VXD}
    v_add_u32 v{VXD+3}, {49152 - 3072}, v{T+6}
    v_and_b32 v{T+4}, 3, v{T+3}
    v_lshrrev_b32 v{T+6}, 5, v{VL}
    v_lshl_add_u32 v{T+4}, v{T+6}, 3, v{T+4}
    s_lshl_b32 s3, s21, 4
    v_add_u32 v{T+4}, s3, v{T+4}
    v_mul_u32_u24 v{T+4}, 6144, v{T+4}
    v_bfe_u32 v{T+6}, v{VL}, 1, 2
    v_xor_b32 v{T+6}, v{T+6}, v{T+5}
    v_lshl_add_u32 v{T+4}, v{T+6}, 5, v{T+4}
    v_and_b32 v{T+6}, 1, v{VL}
    v_lshl_add_u32 v{VWD}, v{T+6}, 4, v{T+4}
    v_add_u32 v{VWD+1}, {4*6144 - 1024}, v{VWD}
    s_lshl_b32 s{SX}, s22, 18
    s_lshl_b32 s{SW0}, s23, 7
    s_add_u32 s{SW1}, s{SW0}, 2048
    s_add_u32 s{SW2}, s{SW0}, 4096
    s_lshl_b32 s{SMX}, s21, 12
    s_lshl_b32 s{SMW}, s21, 11
    s_add_u32 s{SMW}, s{SMW}, 16384
    """)
    e("s_waitcnt lgkmcnt(0)")
    srd(e, 16, 48, 49, 0x400000); srd(e, 12, 50, 51, 0x600000); srd(e, 8, 38, 39, WS_BYTES); srd(e, 40, 36, 37, 256)
    def dma_half(st, half):
        slot = st % NS; out = []
        if half == 0:
            out.append((f"s_add_u32 m0, s{SMX}, {slot*STG}", None))
            for i in range(4):
                out.append((f"buffer_load_dwordx4 v{VXD+i}, s[16:19], s{SX} offen offset:{1024*i} lds", ("w", st)))
        for seg in ((0,) if half == 0 else (1, 2)):
            out.append((f"s_add_u32 m0, s{SMW}, {slot*STG + seg*8192}", None))
            for i in range(2):
                out.append((f"buffer_load_dwordx4 v{VWD+i}, s[12:15], s{SW0+seg} offen offset:{1024*i} lds", ("w", st)))
        if half == 1:
            out += [(f"s_add_u32 s{SX}, s{SX}, 128", None)] + [(f"s_add_u32 s{r}, s{r}, {64*6144}", None) for r in (SW0, SW1, SW2)]
        return out
    def issue(items):
        lines = []
        for l, tag in items:
            lines.append(l)
            if tag is not None: vq.add(tag)
        return lines
    e(f"""
    v_mov_b32 v{T+8}, {hex(OOB)}
    v_mov_b32 v{T+9}, 0
    v_cmp_eq_u32 vcc, 0, v0
    s_cmp_lg_u32 s2, 0
    s_nop 0
    v_cndmask_b32 v{VAT}, v{T+8}, v{T+9}, vcc
    v_cmp_eq_u32 vcc, 0, v{VL}
    s_nop 1
    v_cndmask_b32 v{VW0}, v{T+8}, v{T+9}, vcc
    s_cbranch_scc1 tag_done
    s_memrealtime s[4:5]
    s_waitcnt lgkmcnt(0)
    s_or_b32 s4, s4, 1
    v_mov_b32 v{VNC}, s4
    buffer_store_dword v{VNC}, v{VAT}, s[40:43], 0 offen sc1
    tag_done:
    """)
    pro = []
    for st in range(NS - 1): pro += dma_half(st, 0) + dma_half(st, 1)
    e.ext(fix_m0(issue(pro)))
    if X.get('codepf', 1):
        e(f"""s_cmp_lg_u32 s21, 3
        s_cbranch_scc1 code_done
        s_getpc_b64 s[4:5]
        code_here:
        s_lshr_b32 s3, s2, 3
        s_lshl_b32 s3, s3, 4
        v_and_b32 v{T+3}, 15, v{VL}
        v_add_u32 v{T+3}, s3, v{T+3}
        v_lshlrev_b32 v{T+3}, 7, v{T+3}
        v_min_u32 v{T+3}, code_end-code_here-4, v{T+3}
        global_load_dword v{VPD}, v{T+3}, s[4:5]
        code_done:""")
    ln_loads = [(f"buffer_load_dwordx4 {vr(RAW+4*i,4)}, v{T+2}, s[16:19], 0 offen offset:{512*i}", ("ln", 0)) for i in range(4)] + \
               [(f"buffer_load_dword v{VNC}, v{T+9}, s[40:43], 0 offen sc1", ("ln", 0))]
    if X.get('lnload') is None: e.ext(issue(ln_loads))
    e.ext(fix_m0(issue(dma_half(NS - 1, 0))))
    touch = []
    if X.get('touch'):
        n = len(X['touch']); per = -(-(1024 - NS * 64) * 48 // (n * 1024))
        e(f"""s_lshl_b32 s3, s2, 2
        s_add_u32 s3, s3, s21
        s_mul_i32 s3, s3, {per}
        v_add_u32 v{VPF}, s3, v{VL}
        v_lshlrev_b32 v{VPF}, 7, v{VPF}
        v_add_u32 v{VPF}, {NS*64*6144}, v{VPF}
        v_cmp_gt_u32 vcc, {per}, v{VL}
        v_mov_b32 v{VPD}, 0x70000000
        s_nop 0
        v_cndmask_b32 v{VPF}, v{VPD}, v{VPF}, vcc""")
        touch = [(f"buffer_load_dword v{VPD}, v{VPF}, s[12:15], 0 offen", ("pf", 0)), (f"v_add_u32 v{VPF}, {per*1024*128}, v{VPF}", None)]
    if not X.get('notouch'):
        e(f"s_lshl_b32 s3, s2, 8\nv_add_u32 v{T+3}, s3, v0\nv_lshlrev_b32 v{T+3}, 7, v{T+3}\nv_add_u32 v{T+3}, {NS*64*6144}, v{T+3}")
        e.ext(issue([(f"buffer_load_dword v{VPD}, v{T+3}, s[12:15], 0 offen", ("pf", 0))]))
    e(f"""
    v_and_b32 v{T+3}, 15, v{VL}
    s_lshl_b32 s3, s33, 6
    v_add_u32 v{T+4}, s3, v{T+3}
    v_lshlrev_b32 v{T+4}, 7, v{T+4}
    v_lshrrev_b32 v{T+6}, 1, v{T+3}
    v_xor_b32 v{T+6}, v{T+6}, v{T+5}
    v_lshl_add_u32 v{VXR}, v{T+6}, 4, v{T+4}
    v_xor_b32 v{VXR+1}, 64, v{VXR}
    v_bfe_u32 v{T+4}, v{VL}, 2, 3
    v_lshrrev_b32 v{T+6}, 1, v{T+4}
    v_lshrrev_b32 v{T+7}, 5, v{VL}
    v_lshl_add_u32 v{T+4}, v{T+7}, 4, v{T+4}
    v_lshlrev_b32 v{T+4}, 7, v{T+4}
    v_and_b32 v{T+7}, 3, v{VL}
    v_lshl_add_u32 v{T+4}, v{T+7}, 3, v{T+4}
    v_add_u32 v{T+4}, 16384, v{T+4}
    s_lshl_b32 s3, s34, 1
    s_add_u32 s3, s3, s33
    v_xor_b32 v{T+6}, s3, v{T+6}
    v_lshl_add_u32 v{VWR}, v{T+6}, 5, v{T+4}
    v_xor_b32 v{VWR+1}, 32, v{VWR}
    """)
    for s in range(1, NS):
        for k in range(2):
            e(f"v_add_u32 v{VXR+2*s+k}, {s*STG}, v{VXR+k}\nv_add_u32 v{VWR+2*s+k}, {s*STG}, v{VWR+k}")
    LS = NS * STG if NS < 4 else 0
    LQ = STG
    e(f"""
    s_lshl_b32 s3, s22, 13
    s_lshl_b32 s4, s33, 12
    s_add_u32 s3, s3, s4
    s_add_u32 s46, s3, {STAT}
    v_lshrrev_b32 v{T+4}, 1, v{VL}
    v_lshlrev_b32 v{T+4}, 7, v{T+4}
    v_and_b32 v{T+6}, 1, v{VL}
    v_lshl_add_u32 v{VST}, v{T+6}, 4, v{T+4}
    s_lshl_b32 s3, s21, 12
    s_add_u32 s3, s3, {LS}
    v_lshl_add_u32 v{VSW}, v{VL}, 2, s3
    v_lshl_add_u32 v{VSA}, v{T+3}, 2, s3
    v_lshl_add_u32 v{VSV}, v{T+5}, 4, s3
    v_mov_b32 v{ONE16}, 0x3f803f80
    v_mov_b32 v{ONE16+1}, 0x3f803f80
    v_mov_b32 v{ONE16+2}, 0x3f803f80
    v_mov_b32 v{ONE16+3}, 0x3f803f80
    s_lshl_b32 s35, s23, 1
    s_add_u32 s35, s35, s34
    """)
    emain = e
    e = E()
    e(f"v_readfirstlane_b32 s{SNC}, v{VNC}\ns_cmp_lg_u32 s{SNC}, 0\ns_cbranch_scc1 tagwait_ok")
    poll(e, "tagwait", f"buffer_load_dword v{VNC}, v{T+9}, s[40:43], 0 offen sc1",
         f"v_readfirstlane_b32 s{SNC}, v{VNC}\ns_cmp_lg_u32 s{SNC}, 0\ns_cbranch_scc1 tagwait_ok", 4)
    for r in range(16):
        e(f"v_lshlrev_b32 v{XF+2*r}, 16, v{RAW+r}\nv_and_b32 v{XF+2*r+1}, 0xffff0000, v{RAW+r}")
    def red32(v, t):
        for sh in (8, 4, 2, 1):
            e(f"s_nop 1\nv_add_f32_dpp v{v}, v{v}, v{v} row_ror:{sh} row_mask:0xf bank_mask:0xf")
        e(f"v_mov_b32 v{t}, v{v}\ns_nop 1\nv_permlane16_swap_b32 v{v}, v{t}\nv_add_f32 v{v}, v{v}, v{t}")
    A = T + 12
    e(f"v_pk_add_f32 {vr(A,2)}, {vr(XF,2)}, {vr(XF+2,2)}")
    for r in range(2, 16):
        e(f"v_pk_add_f32 {vr(A,2)}, {vr(A,2)}, {vr(XF+2*r,2)}")
    e(f"v_add_f32 v{A}, v{A}, v{A+1}")
    red32(A, A + 1)
    e(f"v_mul_f32 v{A}, {hex(f2u(1/1024))}, v{A}")
    for r in range(16):
        e(f"v_pk_add_f32 {vr(XF+2*r,2)}, {vr(XF+2*r,2)}, {vr(A,2)} op_sel_hi:[1,0] neg_lo:[0,1] neg_hi:[0,1]")
    e(f"v_pk_mul_f32 {vr(A+2,2)}, {vr(XF,2)}, {vr(XF,2)}")
    for r in range(1, 16):
        e(f"v_pk_fma_f32 {vr(A+2,2)}, {vr(XF+2*r,2)}, {vr(XF+2*r,2)}, {vr(A+2,2)}")
    e(f"v_add_f32 v{A+2}, v{A+2}, v{A+3}")
    red32(A + 2, A + 3)
    e(f"""
    v_mov_b32 v{A+1}, {hex(f2u(1e-5))}
    v_fmac_f32 v{A+1}, {hex(f2u(1/1024))}, v{A+2}
    v_rsq_f32 v{A+1}, v{A+1}
    v_lshrrev_b32 v{T+4}, 1, v{T+1}
    v_lshlrev_b32 v{T+4}, 7, v{T+4}
    v_and_b32 v{T+6}, 1, v{T+1}
    v_lshl_add_u32 v{T+4}, v{T+6}, 4, v{T+4}
    v_cmp_eq_u32 vcc, 0, v{T}
    v_mov_b32 v{A+2}, v{VNC}
    v_mov_b32 v{A+3}, 0
    v_cndmask_b32 v{T+4}, v{T+8}, v{T+4}, vcc
    s_mov_b32 s3, {STAT}
    """)
    ln_block = [l.strip() for l in e.l]
    ln_store = (f"buffer_store_dwordx4 {vr(A,4)}, v{T+4}, s[8:11], s3 offen sc1", ("st", 0))
    e = emain
    def reads(j):
        slot, kk, par = (j // 2) % NS, j & 1, j & 1
        xr = [f"ds_read_b128 {ar(xreg(par, mt),4)}, v{VXR + 2*slot + kk} offset:{mt*2048}" for mt in range(4)]
        wr = []
        for nt in range(6):
            off = (nt >> 1) * 8192 + kk * 4096
            v = VWR + 2 * slot + (nt & 1); d = wreg(par, nt)
            wr += [f"ds_read_b64_tr_b16 {ar(d,2)}, v{v} offset:{off}", f"ds_read_b64_tr_b16 {ar(d+2,2)}, v{v} offset:{off+1024}"]
        return wr[:2] + xr + wr[2:]
    e(f"s_waitcnt vmcnt({vq.need({('w', 0)})})\ns_barrier")
    stamp(e, 1)
    e.ext(reads(0))
    extra_vm = {}; extra_need = {}; extra_post = {}; extra_head = {}
    JLN = X.get('lnstep', 2 * NS - 3)
    if X.get('lnload') is not None:
        for i, j in enumerate(X['lnload']): extra_vm.setdefault(j, []).append(ln_loads[i])
        extra_vm[X['lnload'][-1]].append(ln_loads[4])
    for j in X.get('touch', []): extra_vm.setdefault(j, []).extend(touch)
    gr_load = f"buffer_load_dwordx4 {vr(GR,4)}, v{VST}, s[8:11], s46 offen sc1"
    extra_vm[24] = [(gr_load, ("gr", 0))]
    extra_need[27] = {("gr", 0)}
    chk = E()
    test = f"v_cmp_ne_u32 vcc, s{SNC}, v{GR+2}\ns_cbranch_vccz statwait_ok"
    chk(test)
    poll(chk, "statwait", gr_load, test, 4)
    extra_head[27] = [l.strip() for l in chk.l]
    extra_post[27] = [f"ds_write_b32 v{VSW}, v{GR}", f"ds_write_b32 v{VSW}, v{GR+1} offset:256"]
    extra_post[28] = [f"ds_read2_b32 {vr(MUA+2*mt,2)}, v{VSA} offset0:{16*mt} offset1:{64+16*mt}" for mt in range(4)]
    extra_post[29] = [f"ds_read_b128 {vr(MUV+4*mt,4)}, v{VSV} offset:{64*mt}" for mt in range(4)]
    extra_post[30] = [f"ds_read_b128 {vr(RSV+4*mt,4)}, v{VSV} offset:{256+64*mt}" for mt in range(4)]
    extra_vm[29] = [("s_lshl_b32 s3, s2, 2", None), ("s_add_u32 s3, s3, s21", None), ("s_lshl_b32 s3, s3, 11", None),
                    ("s_mov_b32 s12, s52", None), ("s_mov_b32 s13, s53", None), ("s_mov_b32 s14, 0x200000", None),
                    (f"buffer_load_dwordx4 {vr(WOR,4)}, v{VG}, s[12:15], s3 offen", ("wo", 0)),
                    (f"buffer_load_dwordx4 {vr(WOR+4,4)}, v{VG}, s[12:15], s3 offen offset:1024", ("wo", 0))]
    blocks = []
    for j in range(KS):
        par = j & 1
        tags = set(extra_need.get(j, ()))
        bar = (j & 1) and j + 1 < KS
        if bar: tags.add(("w", (j + 1) // 2))
        b = []
        if j == JLN:
            b += [("W", vq.need({("ln", 0)}), None)] + ln_block + issue([ln_store])
        b += [("W", vq.need(tags), 0)]
        if bar: b.append("s_barrier")
        b += extra_head.get(j, [])
        if j in X.get('stamps', []):
            tmp = E(); stamp(tmp, 7 + X['stamps'].index(j)); b += [l.strip() for l in tmp.l]
        mf = []
        for nt in range(6):
            w = ar(wreg(par, nt), 4)
            for mt in (range(4) if nt % 2 == 0 else range(3, -1, -1)):
                x = ar(xreg(par, mt), 4); d = vr(acc(nt, mt), 4)
                a_, b_ = (x, w) if nt >= 4 else (w, x)
                mf.append(f"v_mfma_f32_16x16x32_bf16 {d}, {a_}, {b_}, {d if j else 0}")
            if nt % 2 == 0:
                d = vr(CS + 2 * nt, 4); o = vr(ONE16, 4)
                a_, b_ = (o, w) if nt >= 4 else (w, o)
                mf.append(f"v_mfma_f32_16x16x32_bf16 {d}, {a_}, {b_}, {d if j else 0}")
        rd = reads(j + 1) if j + 1 < KS else []
        vm = []
        st = (j - 1) // 2 + NS if j & 1 else (j - 2) // 2 + NS
        if st < KS // 2 and not X.get('nodma'): vm += dma_half(st, 0 if j & 1 else 1)
        if X.get('noread'): rd = []
        vm += extra_vm.get(j, [])
        fill = merge(rd, issue(vm))
        if j in extra_post: fill = merge(fill, extra_post[j]) if fill else extra_post[j]
        b += fix_m0(spread(mf, fill, X.get('frac', 0.85) if j + 1 < KS else 1.0))
        blocks.append(b)
    roll(e, "qkv_loop", blocks, 2 * NS, 20)
    stamp(e, 2)
    c = f2u(math.log2(math.e) / math.sqrt(32))
    RQ = T
    e(f"""
    v_lshl_add_u32 v{T+4}, v{VL}, 4, 0
    s_lshl_b32 s3, s21, 12
    s_add_u32 s3, s3, {LS + 1024}
    v_add_u32 v{T+5}, s3, v{T+4}
    s_xor_b32 s3, s21, 2
    s_lshl_b32 s3, s3, 12
    s_add_u32 s3, s3, {LS + 1024}
    v_add_u32 v{T+6}, s3, v{T+4}
    """)
    for i in range(3):
        e(f"ds_write_b128 v{T+5}, {vr(CS+4*i,4)} offset:{i*1024}")
    for mt in range(4):
        e(f"v_mul_f32 v{RQ+mt}, {hex(c)}, v{MUA+2*mt+1}")
    e(f"""
    s_lshl_b32 s3, s35, 18
    s_add_u32 s35, s3, {KV}
    s_lshl_b32 s3, s33, 13
    s_add_u32 s35, s35, s3
    s_lshl_b32 s{SSL}, s22, 14
    s_add_u32 s24, s35, s{SSL}
    v_add_u32 v{VG2}, 4096, v{VG}
    """)
    def ln_rows(nt, mt, rs):
        a = acc(nt, mt); mu, mo = bc(MUA + 2 * mt); r_, ro = bc(rs)
        cs = (CSO if nt & 1 else CS) + 4 * (nt >> 1)
        for p in range(2):
            e(f"v_pk_fma_f32 {vr(a+2*p,2)}, {vr(cs+2*p,2)}, {mu}, {vr(a+2*p,2)} op_sel:[0,{mo},0] op_sel_hi:[1,{mo},1] neg_lo:[0,1,0] neg_hi:[0,1,0]")
        for p in range(2):
            e(f"v_pk_mul_f32 {vr(a+2*p,2)}, {vr(a+2*p,2)}, {r_} op_sel:[0,{ro}] op_sel_hi:[1,{ro}]")
    def ln_cols(nt, mt):
        a = acc(nt, mt); cs, co = bc((CSO if nt & 1 else CS) + 8)
        for p in range(2):
            e(f"v_pk_fma_f32 {vr(a+2*p,2)}, {vr(MUV+4*mt+2*p,2)}, {cs}, {vr(a+2*p,2)} op_sel:[0,{co},0] op_sel_hi:[1,{co},1] neg_lo:[0,1,0] neg_hi:[0,1,0]")
        for p in range(2):
            e(f"v_pk_mul_f32 {vr(a+2*p,2)}, {vr(a+2*p,2)}, {vr(RSV+4*mt+2*p,2)}")
    def pack(nt, mt):
        a, b = acc(nt, mt), acc(nt + 1, mt)
        e(f"""v_cvt_pk_bf16_f32 v{a}, v{a}, v{a+1}
        v_cvt_pk_bf16_f32 v{a+1}, v{a+2}, v{a+3}
        v_cvt_pk_bf16_f32 v{a+2}, v{b}, v{b+1}
        v_cvt_pk_bf16_f32 v{a+3}, v{b+2}, v{b+3}""")
    S = [0, 16]; Pp = [32, 40]; NM = [48, 64, 80, 96]; O = [112, 128, 144, 160]; U = 176
    KR = lambda t: 16 * (t & 3)
    VR_ = lambda t: 16 * (t & 3) + 8
    Q = [64, 72, 80, 88]; L = [96, 100, 104, 108]; ONE = 112
    def unswap(nt, label):
        e(f"s_cmp_eq_u32 s33, 0\ns_cbranch_scc1 {label}")
        for n in nt:
            for mt in range(4):
                a = acc(n, mt)
                e(f"v_swap_b32 v{a}, v{a+2}\nv_swap_b32 v{a+1}, v{a+3}")
        e(f"{label}:\ns_nop 1")
    e("s_waitcnt lgkmcnt(0)\ns_barrier")
    for i in range(3):
        e(f"ds_read_b128 {vr(CSO+4*i,4)}, v{T+6} offset:{i*1024}")
    for mt in range(4):
        ln_rows(2, mt, MUA + 2*mt + 1); ln_cols(4, mt)
    e("s_waitcnt lgkmcnt(0)")
    for mt in range(4):
        ln_rows(3, mt, MUA + 2*mt + 1); pack(2, mt)
        ln_cols(5, mt); pack(4, mt)
    unswap((2, 4), "unswap_kv")
    for Tt in range(2):
        vg = VG2 if Tt else VG
        a, b = acc(2, 2*Tt), acc(2, 2*Tt + 1)
        for r in range(4): e(f"v_permlane16_swap_b32 v{a+r}, v{b+r}")
        e.ext(issue([(f"buffer_store_dwordx4 {vr(acc(2, 2*Tt+s),4)}, v{vg}, s[8:11], s24 offen offset:{s*1024} sc1", ("kv", 0)) for s in range(2)]))
        for sw in ("16", "32"):
            for s in range(2):
                a = acc(4, 2*Tt + s)
                for p in range(2): e(f"v_permlane{sw}_swap_b32 v{a+p}, v{a+2+p}")
        e.ext(issue([(f"buffer_store_dwordx4 {vr(acc(4, 2*Tt+s),4)}, v{vg}, s[8:11], s24 offen offset:{2048 + s*1024} sc1", ("kv", 0)) for s in range(2)]))
    W6 = T + 8
    e(f"s_waitcnt vmcnt({vq.need({('wo', 0)})})\nv_mov_b32 v{W6}, 0")
    for r in range(8):
        e(f"v_dot2c_f32_bf16 v{W6}, v{WOR+r}, v{ONE16}")
    e("s_nop 1")
    red32(W6, W6 + 1)
    e(f"""v_mov_b32 v{W6+1}, v{W6}
    s_lshl_b32 s3, s2, 7
    s_lshl_b32 s4, s21, 2
    v_permlane32_swap_b32 v{W6}, v{W6+1}
    v_add_f32 v{W6}, v{W6}, v{W6+1}
    v_mul_f32 v{W6}, {hex(f2u(1/1024))}, v{W6}
    v_cvt_pk_bf16_f32 v{W6+1}, v{W6}, v{W6}
    v_and_b32 v{W6+2}, 0xffff0000, v{W6+1}
    v_sub_f32 v{W6+2}, v{W6}, v{W6+2}
    v_cvt_pk_bf16_f32 v{W6+1}, v{W6}, v{W6+2}
    s_add_u32 s3, s3, s4
    s_add_u32 s3, s3, {WB2}
    """)
    e.ext(issue([(f"buffer_store_dword v{W6+1}, v{VW0}, s[8:11], s3 offen sc1", ("kv", 0))]))
    for mt in range(4):
        ln_rows(0, mt, RQ + mt); ln_rows(1, mt, RQ + mt); pack(0, mt)
    unswap((0,), "unswap_q")
    e(f"s_lshl_b32 s3, s21, 12\ns_add_u32 s3, s3, {LQ}\nv_add_u32 v{T+4}, s3, v{VG}\ns_xor_b32 s3, s21, 2\ns_lshl_b32 s3, s3, 12\ns_add_u32 s3, s3, {LQ}\nv_add_u32 v{T+5}, s3, v{VG}")
    for Tt in range(2):
        a, b = acc(0, 2*Tt), acc(0, 2*Tt + 1)
        for r in range(4): e(f"v_permlane16_swap_b32 v{a+r}, v{b+r}")
    for i in range(4):
        e(f"ds_write_b128 v{T+4}, {vr(acc(0, i),4)} offset:{i*1024}")
    for Tt in range(2):
        for r in range(8):
            e(f"v_accvgpr_write_b32 a{KR(Tt)+r}, v{acc(2, 2*Tt)+r}\nv_accvgpr_write_b32 a{VR_(Tt)+r}, v{acc(4, 2*Tt)+r}")
    for r in range(16):
        e(f"v_accvgpr_write_b32 a{Q[0]+r}, v{r}")
    e("s_waitcnt lgkmcnt(0)\ns_barrier")
    for i in range(4):
        e(f"ds_read_b128 {ar(Q[2]+4*i,4)}, v{T+5} offset:{i*1024}")
    e(f"""
    v_and_b32 v{U}, 3, v{VL}
    v_bfe_u32 v{U+1}, v{VL}, 2, 1
    v_bfe_u32 v{U+2}, v{VL}, 4, 1
    v_xor_b32 v{U+1}, v{U+1}, v{U+2}
    v_or_b32 v{U}, v{U}, v{U+1}
    v_mov_b32 v{U+1}, 0x3f803f80
    v_cmp_eq_u32 vcc, 0, v{U}
    s_nop 1
    v_cndmask_b32 v{U}, 0, v{U+1}, vcc
    """)
    for r in range(4): e(f"v_accvgpr_write_b32 a{ONE+r}, v{U}")
    def qk(q, t, s, c):
        return [f"v_mfma_f32_32x32x16_bf16 {vr(s,16)}, {ar(KR(t),4)}, {ar(Q[q],4)}, {c}",
                f"v_mfma_f32_32x32x16_bf16 {vr(s,16)}, {ar(KR(t)+4,4)}, {ar(Q[q]+4,4)}, {vr(s,16)}"]
    def pv(q, t, p, first=False):
        o, l = vr(O[q], 16), ar(L[q], 4)
        return [f"v_mfma_f32_32x32x16_bf16 {o}, {ar(VR_(t),4)}, {vr(p,4)}, {0 if first else o}",
                f"v_mfma_f32_32x32x16_bf16 {o}, {ar(VR_(t)+4,4)}, {vr(p+4,4)}, {o}",
                f"v_mfma_f32_16x16x32_bf16 {l}, {ar(ONE,4)}, {vr(p,4)}, {0 if first else l}",
                f"v_mfma_f32_16x16x32_bf16 {l}, {ar(ONE,4)}, {vr(p+4,4)}, {l}"]
    def tile_max(s, m, init):
        if init:
            e(f"v_max3_f32 v{m}, v{s}, v{s+1}, v{s+2}\nv_max_f32 v{m}, v{m}, v{s+3}")
        else:
            e(f"v_max3_f32 v{m}, v{s}, v{s+1}, v{m}\nv_max3_f32 v{m}, v{s+2}, v{s+3}, v{m}")
        for r in range(4, 16, 2):
            e(f"v_max3_f32 v{m}, v{s+r}, v{s+r+1}, v{m}")
    def set_negmax():
        for q in range(4): e(f"v_mov_b32 v{U+4+q}, v{U+q}")
        e("s_nop 1")
        for q in range(4): e(f"v_permlane32_swap_b32 v{U+q}, v{U+4+q}")
        for q in range(4): e(f"v_max_f32 v{U+q}, v{U+q}, v{U+4+q}")
        for q in range(4):
            for r in range(0, 16, 2):
                s_, o_ = bc(U + q)
                e(f"v_pk_mul_f32 {vr(NM[q]+r,2)}, {s_}, -1.0 op_sel:[{o_},0] op_sel_hi:[{o_},0]")
    e("s_nop 1")
    for q in range(2): e.ext(qk(q, 0, O[q], "0"))
    e("s_waitcnt lgkmcnt(0)")
    for q in range(2, 4): e.ext(qk(q, 0, O[q], "0"))
    if pf:
        e(f"""s_cmp_eq_u32 s21, 1
        s_cselect_b32 s44, s58, s56
        s_cselect_b32 s45, s59, s57
        s_cmp_eq_u32 s21, 2
        s_cselect_b32 s44, s60, s44
        s_cselect_b32 s45, s61, s45
        s_mov_b32 s46, {1024*7168}
        s_cmp_eq_u32 s21, 3
        s_cselect_b32 s44, s52, s44
        s_cselect_b32 s45, s53, s45
        s_cselect_b32 s46, 0x200000, s46
        s_mov_b32 s47, 0x00020000
        s_lshl_b32 s3, s2, 4
        v_and_b32 v{VPF}, 15, v{VL}
        v_add_u32 v{VPF}, s3, v{VPF}
        v_lshlrev_b32 v{VPF}, 7, v{VPF}
        v_cmp_gt_u32 vcc, 16, v{VL}
        v_mov_b32 v{VPD}, {hex(OOB - (16 << 19))}
        s_nop 0
        v_cndmask_b32 v{VPF}, v{VPD}, v{VPF}, vcc
        """)
    else:
        e("s_nop 15")
    for q in range(4): tile_max(O[q], U + q, True)
    set_negmax()
    e("s_nop 1")
    e.ext(qk(0, 0, S[0], vr(NM[0], 16)))
    e(f"""
    s_lshl_b32 s3, s23, 4
    s_add_u32 s4, s3, s22
    s_lshl_b32 s4, s4, 7
    s_add_u32 s25, s4, {FLG}
    s_lshl_b32 s3, s3, 7
    s_add_u32 s26, s3, {FLG}
    v_and_b32 v{VFL}, 15, v{VL}
    v_lshlrev_b32 v{VFL}, 7, v{VFL}
    s_lshl_b32 s3, s21, 4
    v_lshrrev_b32 v{U}, 3, v{VL}
    v_add_u32 v{U}, s3, v{U}
    v_bfe_u32 v{U+1}, v{U}, 1, 2
    v_bfe_u32 v{U+2}, v{VL}, 1, 2
    v_xor_b32 v{U+1}, v{U+1}, v{U+2}
    v_lshlrev_b32 v{U+1}, 5, v{U+1}
    v_and_b32 v{U+2}, 1, v{VL}
    v_lshl_add_u32 v{U+1}, v{U+2}, 4, v{U+1}
    v_lshl_add_u32 v{VD3}, v{U}, 11, v{U+1}
    v_add_u32 v{VD3+1}, {8*2048 - 1024}, v{VD3}
    s_bfe_u32 s30, s2, 0x40003
    s_lshl_b32 s30, s30, 7
    s_lshl_b32 s32, s21, 11
    """)
    stamp(e, 3)
    def phase(t, q, extra):
        s, p = S[q & 1], Pp[q & 1]
        nt_, nq = (t, q + 1) if q < 3 else (t + 1, 0)
        pt_, pq = (t, q - 1) if q > 0 else (t - 1, 3)
        mf = (qk(nq, nt_, S[nq & 1], vr(NM[nq], 16)) if nt_ < 32 else [None, None]) + \
             (pv(pq, pt_, Pp[pq & 1], pt_ == 0) if pt_ >= 0 else [None] * 4)
        ex = [f"v_exp_f32 v{s+r}, v{s+r}" for r in range(16)]
        cv = [f"v_cvt_pk_bf16_f32 v{p+r}, v{s+2*r}, v{s+2*r+1}" for r in range(8)]
        groups = [ex[0:3], ex[3:6], [ex[6], ex[7], cv[0], cv[1]], [ex[8], ex[9], cv[2], cv[3]], [ex[10]],
                  [ex[11], ex[12], ex[13], cv[4], ex[14], cv[5], ex[15], cv[6], cv[7]]]
        out = []
        for i in range(6):
            if mf[i]: out.append(mf[i])
            out += extra.get(i, [])
            out += groups[i]
        return out
    def kv_load(t, i):
        d = (KR(t), KR(t) + 4, VR_(t), VR_(t) + 4)[i]
        return (f"buffer_load_dwordx4 {ar(d,4)}, v{VG2 if t & 1 else VG}, s[8:11], s24 offen offset:{i*1024} {X.get('kvflag', 'sc1')}", ("kv", t))
    next_pair = [f"s_add_u32 s{SSL}, s{SSL}, 16384", f"s_and_b32 s{SSL}, s{SSL}, 0x3ffff", f"s_add_u32 s24, s35, s{SSL}"]
    for q in range(3): e.ext(phase(0, q, {}))
    e("s_waitcnt vmcnt(0)\ns_barrier")
    vq.drain()
    e(f"buffer_store_dword v{VNC}, v{VAT}, s[8:11], s25 offen sc1")
    e.ext(phase(0, 3, {}))
    for q in range(3): e.ext(phase(1, q, {}))
    W6 = U + 8
    poll(e, "kvwait", f"buffer_load_dword v{W6}, v{VFL}, s[8:11], s26 offen sc1",
         f"v_cmp_ne_u32 vcc, s{SNC}, v{W6}\ns_cbranch_vccz kvwait_ok", 4)
    e.ext(next_pair)
    e.ext(issue([kv_load(t, i) for t in (2, 3) for i in range(4)]))
    e.ext(next_pair)
    e.ext(issue([kv_load(4, i) for i in range(4)]))
    e(f"s_waitcnt vmcnt({vq.need({('kv', 2)})})")
    stamp(e, 4)
    e.ext(phase(1, 3, {}))
    blocks = []
    for t in range(2, 32):
        b = []
        for q in range(4):
            ex = {}
            if t + 3 < 32 or X.get('overrun', 1) and t < 30:
                ex[0] = issue([kv_load(t + 3, q)])
                if q == 3 and not t & 1:
                    ex[1] = next_pair[:1]; ex[2] = next_pair[1:2]; ex[3] = next_pair[2:]
            if pf and q == 3 and t & 1 and t < 30:
                ex[1] = issue([(f"buffer_load_dword v{VPD}, v{VPF}, s[44:47], 0 offen", ("pf", t))])
                ex[2] = [f"v_add_u32 v{VPF}, {1 << 19}, v{VPF}"]
            if not t & 1 and t < 30:
                if q == 1:
                    ex[1] = ["s_mov_b32 m0, s32"]
                    ex[2] = issue([(f"buffer_load_dwordx4 v{VD3}, s[12:15], s30 offen lds", ("wo", t))])
                if q == 2:
                    ex[1] = issue([(f"buffer_load_dwordx4 v{VD3+1}, s[12:15], s30 offen offset:1024 lds", ("wo", t))])
                    ex[2] = ["s_add_u32 s32, s32, 8192"]; ex[3] = [f"s_add_u32 s30, s30, {64*2048}"]
            if q == 2 and t + 1 < 32:
                ex[5] = [("W", vq.need({("kv", t + 1)}), None)]
            b += phase(t, q, ex)
        blocks.append(b)
    roll(e, "attn_loop", blocks, 4, 20)
    e("s_nop 1")
    e.ext(pv(3, 31, Pp[1]))
    stamp(e, 5)
    e(f"s_nop 7\nv_mov_b32 v{U}, 0\nv_mov_b32 v{U+1}, 0")
    for q in range(4):
        for r in range(0, 16, 2):
            e(f"v_pk_fma_f32 {vr(U,2)}, {vr(O[q]+r,2)}, 0, {vr(U,2)} op_sel_hi:[1,0,1]")
    for q in range(4): e(f"v_accvgpr_read_b32 v{U+4+q}, a{L[q]}")
    e(f"""
    v_add_f32 v{U}, v{U}, v{U+1}
    v_add_f32 v{U+2}, v{U+4}, v{U+5}
    v_add_f32 v{U+3}, v{U+6}, v{U+7}
    v_add_f32 v{U}, v{U}, v{U+2}
    v_add_f32 v{U}, v{U}, v{U+3}
    v_mov_b32 v{U+1}, {hex(f2u(2.0**100))}
    v_cmp_nlt_f32 vcc, v{U}, v{U+1}
    s_cbranch_vccnz attn_slow
    attn_merge:
    """)
    e(f"""
    s_mul_i32 s3, s21, 9216
    s_add_u32 s3, s3, 114688
    v_add_u32 v{T}, s3, v{VG}
    s_xor_b32 s4, s21, 2
    s_mul_i32 s4, s4, 9216
    s_add_u32 s4, s4, 114688
    v_add_u32 v{T+1}, s4, v{VG}
    v_mov_b32 v{U+8}, v{U+6}
    v_mov_b32 v{U+9}, v{U+7}
    v_mov_b32 v{U+10}, v{NM[2]}
    v_mov_b32 v{U+11}, v{NM[3]}
    ds_write_b128 v{T}, {vr(U+8,4)} offset:8192
    """)
    for i in range(8):
        e(f"ds_write_b128 v{T}, {vr(O[2]+4*i,4)} offset:{i*1024}")
    e(f"""
    v_bfe_u32 v{T+4}, v{VL}, 4, 1
    v_lshlrev_b32 v{T+4}, 10, v{T+4}
    v_and_b32 v{T+5}, 15, v{VL}
    v_lshl_add_u32 v{T+4}, v{T+5}, 4, v{T+4}
    v_lshrrev_b32 v{T+5}, 5, v{VL}
    v_lshl_add_u32 v{T+4}, v{T+5}, 8, v{T+4}
    s_lshl_b32 s3, s22, 2
    s_lshl_b32 s4, s33, 1
    s_add_u32 s3, s3, s4
    s_lshl_b32 s3, s3, 16
    s_lshl_b32 s4, s23, 12
    s_add_u32 s3, s3, s4
    s_lshl_b32 s4, s34, 11
    s_add_u32 s3, s3, s4
    s_add_u32 s4, s3, {OF}
    s_add_u32 s5, s4, 65536
    s_waitcnt lgkmcnt(0)
    s_barrier
    ds_read_b128 {vr(U+8,4)}, v{T+1} offset:8192
    """)
    for i in range(8):
        e(f"ds_read_b128 {vr(O[2]+4*i,4)}, v{T+1} offset:{i*1024}")
    e("s_waitcnt lgkmcnt(8)")
    F = U + 12
    for q in range(2):
        e(f"""v_min_f32 v{U}, v{NM[q]}, v{U+10+q}
        v_sub_f32 v{U+1}, v{U}, v{NM[q]}
        v_sub_f32 v{U+2}, v{U}, v{U+10+q}
        v_exp_f32 v{U+1}, v{U+1}
        v_exp_f32 v{U+2}, v{U+2}
        s_nop 0
        v_mul_f32 v{U}, v{U+4+q}, v{U+1}
        v_fmac_f32 v{U}, v{U+8+q}, v{U+2}
        v_rcp_f32 v{U}, v{U}
        s_nop 0
        v_mul_f32 v{F+2*q}, v{U+1}, v{U}
        v_mul_f32 v{F+2*q+1}, v{U+2}, v{U}""")
    for q in range(2):
        for r in range(0, 16, 2):
            e(f"v_pk_mul_f32 {vr(O[q]+r,2)}, {vr(O[q]+r,2)}, {vr(F+2*q,2)} op_sel_hi:[1,0]")
    for q in range(2):
        e(f"s_waitcnt lgkmcnt({4 - 4*q})")
        for r in range(0, 16, 2):
            e(f"v_pk_fma_f32 {vr(O[q]+r,2)}, {vr(O[2+q]+r,2)}, {vr(F+2*q,2)}, {vr(O[q]+r,2)} op_sel:[0,1,0] op_sel_hi:[1,1,1]")
        for r in range(8):
            e(f"v_cvt_pk_bf16_f32 v{Pp[q]+r}, v{O[q]+2*r}, v{O[q]+2*r+1}")
        for ci in range(2):
            e(f"buffer_store_dwordx4 {vr(Pp[q]+4*ci,4)}, v{T+4}, s[8:11], s{4+q} offen offset:{ci*512} sc1")
    def slow(e2):
        nonlocal e
        keep = e; e = e2
        e("attn_slow:\ns_waitcnt vmcnt(0) lgkmcnt(0)")
        for q in range(4): e(f"v_mov_b32 v{U+q}, 0xff800000")
        e("s_mov_b32 s4, 0\nattn_slow_max:")
        e("s_lshr_b32 s3, s4, 1\ns_lshl_b32 s3, s3, 14\ns_and_b32 s5, s4, 1\ns_lshl_b32 s5, s5, 12\ns_add_u32 s3, s3, s5\ns_add_u32 s24, s35, s3")
        e.ext([kv_load(0, i)[0] for i in range(2)])
        e("s_waitcnt vmcnt(0)")
        for q in range(4): e.ext(qk(q, 0, O[q], "0"))
        e("s_nop 15")
        for q in range(4): tile_max(O[q], U + q, False)
        e("s_add_u32 s4, s4, 1\ns_cmp_lt_u32 s4, 32\ns_cbranch_scc1 attn_slow_max")
        set_negmax()
        for q in range(4):
            for r in range(16): e(f"v_mov_b32 v{O[q]+r}, 0")
            for r in range(4): e(f"v_accvgpr_write_b32 a{L[q]+r}, 0")
        e("s_mov_b32 s4, 0\nattn_slow_acc:")
        e("s_lshr_b32 s3, s4, 1\ns_lshl_b32 s3, s3, 14\ns_and_b32 s5, s4, 1\ns_lshl_b32 s5, s5, 12\ns_add_u32 s3, s3, s5\ns_add_u32 s24, s35, s3")
        e.ext([kv_load(0, i)[0] for i in range(4)])
        e("s_waitcnt vmcnt(0)")
        for q in range(4):
            e.ext(qk(q, 0, S[0], vr(NM[q], 16)))
            e("s_nop 15")
            for r in range(16): e(f"v_exp_f32 v{S[0]+r}, v{S[0]+r}")
            e("s_nop 0")
            for r in range(8): e(f"v_cvt_pk_bf16_f32 v{Pp[0]+r}, v{S[0]+2*r}, v{S[0]+2*r+1}")
            e("s_nop 1")
            e.ext(pv(q, 0, Pp[0]))
        e("s_nop 15\ns_add_u32 s4, s4, 1\ns_cmp_lt_u32 s4, 32\ns_cbranch_scc1 attn_slow_acc")
        for q in range(4): e(f"v_accvgpr_read_b32 v{U+4+q}, a{L[q]}")
        e("s_branch attn_merge")
        e = keep
    return slow


def publish(e, flag_code):
    e(flag_code)
    e(f"s_waitcnt vmcnt(0)\ns_barrier\nbuffer_store_dword v{VNC}, v{VAT}, s[8:11], s3 offen sc1")

def await_flags(e, label, soff, n, vt):
    e(f"v_and_b32 v{VFL}, {n-1}, v{VL}\nv_lshlrev_b32 v{VFL}, 7, v{VFL}")
    poll(e, label, f"buffer_load_dword v{vt}, v{VFL}, s[8:11], s{soff} offen sc1",
         f"v_cmp_ne_u32 vcc, s{SNC}, v{vt}\ns_cbranch_vccz {label}_ok", 4)

def tr_addr(e, VR, t):
    e(f"""
    v_bfe_u32 v{t}, v{VL}, 2, 3
    v_lshrrev_b32 v{t+1}, 1, v{t}
    v_lshrrev_b32 v{t+2}, 5, v{VL}
    v_lshl_add_u32 v{t}, v{t+2}, 4, v{t}
    v_lshlrev_b32 v{t}, 7, v{t}
    v_and_b32 v{t+2}, 3, v{VL}
    v_lshl_add_u32 v{t}, v{t+2}, 3, v{t}
    """)
    for nt in range(4):
        e(f"v_xor_b32 v{t+2}, {nt}, v{t+1}\nv_lshl_add_u32 v{VR+nt}, v{t+2}, 5, v{t}")

def snake(NT, MT):
    return [(nt, mt) for nt in range(NT) for mt in (range(MT) if nt % 2 == 0 else range(MT - 1, -1, -1))]

def issuer(vq):
    def issue(items):
        lines = []
        for l, tag in items:
            lines.append(l)
            if tag is not None: vq.add(tag)
        return lines
    return issue

def oproj(e, X):
    vq = VQ(); issue = issuer(vq)
    KS, XD = 32, X.get('XD3', 8)
    acc = lambda nt, mt: (nt * 2 + mt) * 4
    wreg = lambda par, nt: (par * 5 + nt) * 4
    xreg = lambda s, mt: 40 + (s * 2 + mt) * 4
    VR, VB, VXD, VMU, WBR, t = 44, 48, 49, 50, 52, 56
    LWB, LX = 131072, 135168
    SX = 24
    tr_addr(e, VR, t)
    e(f"""
    v_and_b32 v{t}, 1, v{VL}
    v_lshlrev_b32 v{t}, 6, v{t}
    v_lshrrev_b32 v{t+1}, 4, v{VL}
    v_lshl_add_u32 v{t}, v{t+1}, 4, v{t}
    v_add_u32 v{VB}, {LWB}, v{t}
    v_lshrrev_b32 v{t}, 3, v{VL}
    v_and_b32 v{t+2}, 7, v{VL}
    v_xor_b32 v{t+1}, v{t+1}, v{t+2}
    v_lshlrev_b32 v{t+1}, 4, v{t+1}
    v_lshl_add_u32 v{VXD}, v{t}, 11, v{t+1}
    v_xor_b32 v{t+3}, 64, v{VXD}
    v_add_u32 v{t+4}, {16384 - 1024}, v{t+3}
    v_add_u32 v{t+5}, {32768 - 2048}, v{VXD}
    v_add_u32 v{t+6}, {49152 - 3072}, v{t+3}
    v_and_b32 v{t}, 15, v{VL}
    v_lshrrev_b32 v{t+1}, 1, v{t}
    v_lshlrev_b32 v{t+1}, 7, v{t+1}
    v_and_b32 v{t+2}, 1, v{t}
    v_lshl_add_u32 v{t+7}, v{t+2}, 4, v{t+1}
    s_lshl_b32 s4, s21, 6
    v_add_u32 v{t+8}, s4, v{VL}
    v_lshlrev_b32 v{t+9}, 7, v{t+8}
    v_lshrrev_b32 v{t}, 3, v{t+8}
    v_lshlrev_b32 v{t}, 7, v{t}
    v_bfe_u32 v{t+1}, v{VL}, 2, 1
    v_lshl_add_u32 v{t}, v{t+1}, 5, v{t}
    v_and_b32 v{t+1}, 1, v{VL}
    v_lshl_add_u32 v{t}, v{t+1}, 4, v{t}
    v_bfe_u32 v{t+1}, v{VL}, 1, 1
    v_lshl_add_u32 v{t}, v{t+1}, 3, v{t}
    v_add_u32 v{t+8}, {LWB}, v{t}
    """)
    publish(e, f"s_lshl_b32 s3, s22, 4\ns_add_u32 s3, s3, s23\ns_lshl_b32 s3, s3, 7\ns_add_u32 s3, s3, {F2}")
    stamp(e, 6)
    e(f"""
    s_mov_b32 s22, s23
    s_bfe_u32 s23, s2, 0x40003
    s_lshl_b32 s35, s22, 2
    s_add_u32 s35, s35, s21
    s_lshl_b32 s{SX}, s35, 16
    s_lshl_b32 s4, s23, 7
    s_add_u32 s25, s{SX}, s4
    s_add_u32 s{SX}, s{SX}, {OF}
    s_lshl_b32 s33, s21, 12
    s_lshl_b32 s26, s35, 11
    s_add_u32 s26, s26, {STAT}
    s_mov_b32 s27, {WB2}
    s_lshl_b32 s28, s22, 11
    s_add_u32 s28, s28, {F2}
    """)
    for st in range(2):
        e(f"""s_mov_b32 m0, s32
        s_add_u32 s32, s32, 8192
        buffer_load_dwordx4 v{VD3}, s[12:15], s30 offen lds
        buffer_load_dwordx4 v{VD3+1}, s[12:15], s30 offen offset:1024 lds
        s_add_u32 s30, s30, {64*2048}""")
    e(f"s_add_u32 m0, s33, {LX}\nbuffer_load_dwordx4 {vr(WBR,4)}, v{t+9}, s[8:11], s27 offen sc1")
    for i, v in enumerate((VXD, t + 4, t + 5, t + 6)):
        e(f"buffer_load_dwordx4 v{v}, s[16:19], s25 offen offset:{i*1024} lds")
    for mt in range(2):
        e(f"buffer_load_dword v{VMU+mt}, v{t+7}, s[8:11], s26 offen offset:{mt*1024} sc1")
    await_flags(e, "owait", 28, 16, t)
    stamp(e, 7)
    def xitems(j):
        return [(f"buffer_load_dwordx4 {ar(xreg(j % XD, mt),4)}, v{VG}, s[8:11], s{SX} offen offset:{mt*1024} sc1", ("x", j)) for mt in range(2)] + \
               [(f"s_add_u32 s{SX}, s{SX}, 2048", None)]
    e.ext(issue([(f"buffer_load_dwordx4 {vr(WBR,4)}, v{t+9}, s[8:11], s27 offen sc1", ("wb", 0))]))
    for mt in range(2):
        e.ext(issue([(f"buffer_load_dword v{VMU+mt}, v{t+7}, s[8:11], s26 offen offset:{mt*1024} sc1", ("wb", 0))]))
    for j in range(XD - 1): e.ext(issue(xitems(j)))
    e(f"""s_mov_b32 s4, 0x05040100
    s_mov_b32 s5, 0x07060302
    s_waitcnt vmcnt({vq.need({('wb', 0)})})
    v_perm_b32 v{t}, v{WBR+1}, v{WBR}, s4
    v_perm_b32 v{t+1}, v{WBR+3}, v{WBR+2}, s4
    v_perm_b32 v{t+2}, v{WBR+1}, v{WBR}, s5
    v_perm_b32 v{t+3}, v{WBR+3}, v{WBR+2}, s5
    ds_write_b64 v{t+8}, {vr(t,2)}
    ds_write_b64 v{t+8}, {vr(t+2,2)} offset:64
    s_waitcnt lgkmcnt(0)
    s_barrier""")
    P = 8
    def reads(j, rel):
        out = []
        for nt in range(4):
            d = wreg(j & 1, nt)
            out += [f"ds_read_b64_tr_b16 {ar(d,2)}, v{VR+nt} offset:{rel*4096}", f"ds_read_b64_tr_b16 {ar(d+2,2)}, v{VR+nt} offset:{rel*4096 + 1024}"]
        return out + [f"ds_read_b128 {ar(wreg(j & 1, 4),4)}, v{VB} offset:{rel*128}"]
    e.ext(reads(0, 0))
    for r in range(40): e(f"v_mov_b32 v{r}, 0")
    blocks = []
    for j in range(KS):
        b = [("W", vq.need({("x", j)}), 0)]
        mf = [f"v_mfma_f32_16x16x32_bf16 {vr(acc(nt,mt),4)}, {ar(wreg(j&1,nt),4)}, {ar(xreg(j%XD,mt),4)}, {vr(acc(nt,mt),4)}" for nt, mt in snake(5, 2)]
        rd = reads(j + 1, j % P + 1) if j + 1 < KS else []
        if j % P == P - 1 and j + 1 < KS:
            rd += [f"v_add_u32 v{VR+nt}, {P*4096}, v{VR+nt}" for nt in range(4)] + [f"v_add_u32 v{VB}, {P*128}, v{VB}"]
        vm = issue(xitems(j + XD - 1)) if j + XD - 1 < KS else []
        b += spread(mf, rd[:9] + vm + rd[9:], X.get('frac3', 0.8))
        blocks.append(b)
    roll(e, "oproj_loop", blocks, P * XD // math.gcd(P, XD), 20)
    stamp(e, 8)
    XR, PK, SS = t + 10, t + 26, t + 4
    e(f"""
    v_and_b32 v{t}, 15, v{VL}
    v_lshrrev_b32 v{t+1}, 1, v{t}
    v_lshrrev_b32 v{t+2}, 5, v{VL}
    v_xor_b32 v{t+1}, v{t+1}, v{t+2}
    v_lshlrev_b32 v{t}, 7, v{t}
    v_bfe_u32 v{t+2}, v{VL}, 4, 1
    v_lshl_add_u32 v{t}, v{t+2}, 3, v{t}
    s_add_u32 s4, s33, {LX}
    v_add_u32 v{t}, s4, v{t}
    """)
    for nt in range(4):
        e(f"v_xor_b32 v{t+2}, {2*nt}, v{t+1}\nv_lshl_add_u32 v{t+2}, v{t+2}, 4, v{t}")
        for mt in range(2):
            e(f"ds_read_b64 {vr(XR + (nt*2+mt)*2, 2)}, v{t+2} offset:{mt*2048}")
    for mt in range(2):
        a = acc(4, mt)
        e(f"v_add_f32 v{a}, v{a}, v{a+1}\nv_add_f32 v{VMU+mt}, v{VMU+mt}, v{a}")
    e(f"""
    s_lshr_b32 s4, s35, 1
    s_lshl_b32 s4, s4, 17
    s_and_b32 s5, s35, 1
    s_lshl_b32 s5, s5, 11
    s_add_u32 s4, s4, s5
    s_lshl_b32 s5, s23, 13
    s_add_u32 s4, s4, s5
    s_add_u32 s26, s4, {HC}
    s_add_u32 s27, s26, 4096
    s_waitcnt lgkmcnt(0)
    """)
    for mt in range(2):
        mu, mo = bc(VMU + mt)
        for nt in range(4):
            a = acc(nt, mt); xr = XR + (nt*2+mt)*2
            e(f"""v_lshlrev_b32 v{t}, 16, v{xr}
            v_and_b32 v{t+1}, 0xffff0000, v{xr}
            v_lshlrev_b32 v{t+2}, 16, v{xr+1}
            v_and_b32 v{t+3}, 0xffff0000, v{xr+1}""")
            for p in range(2):
                e(f"v_pk_add_f32 {vr(a+2*p,2)}, {vr(a+2*p,2)}, {mu} op_sel:[0,{mo}] op_sel_hi:[1,{mo}] neg_lo:[0,1] neg_hi:[0,1]")
            for p in range(2):
                e(f"v_pk_add_f32 {vr(a+2*p,2)}, {vr(a+2*p,2)}, {vr(t+2*p,2)}")
            for p in range(2):
                if nt == 0 and p == 0:
                    e(f"v_pk_mul_f32 {vr(SS+2*mt,2)}, {vr(a,2)}, {vr(a,2)}")
                else:
                    e(f"v_pk_fma_f32 {vr(SS+2*mt,2)}, {vr(a+2*p,2)}, {vr(a+2*p,2)}, {vr(SS+2*mt,2)}")
            d = PK + (mt*2 + (nt >> 1)) * 4 + (nt & 1) * 2
            e(f"v_cvt_pk_bf16_f32 v{d}, v{a}, v{a+1}\nv_cvt_pk_bf16_f32 v{d+1}, v{a+2}, v{a+3}")
            if nt & 1:
                e(f"buffer_store_dwordx4 {vr(d-2,4)}, v{VG}, s[8:11], s{26 + (nt>>1)} offen offset:{mt*1024} sc1")
    e(f"""
    v_add_f32 v{SS}, v{SS}, v{SS+1}
    v_add_f32 v{SS+2}, v{SS+2}, v{SS+3}
    v_lshlrev_b32 v{t}, 2, v{VL}
    v_mov_b32 v{t+1}, {hex(OOB)}
    v_permlane16_swap_b32 v{SS}, v{SS+2}
    v_cmp_gt_u32 vcc, 32, v{VL}
    v_add_f32 v{SS}, v{SS}, v{SS+2}
    v_mov_b32 v{SS+1}, v{SS}
    v_cndmask_b32 v{t}, v{t+1}, v{t}, vcc
    s_lshl_b32 s4, s35, 4
    v_permlane32_swap_b32 v{SS}, v{SS+1}
    v_add_f32 v{SS}, v{SS}, v{SS+1}
    s_add_u32 s4, s4, s23
    s_lshl_b32 s4, s4, 7
    s_add_u32 s4, s4, {SSQ}
    buffer_store_dword v{SS}, v{t}, s[8:11], s4 offen sc1
    s_cmp_lg_u32 s23, 0
    s_cbranch_scc1 mu2_done
    v_permlane16_swap_b32 v{VMU}, v{VMU+1}
    s_lshl_b32 s4, s35, 7
    s_add_u32 s4, s4, {MU2}
    buffer_store_dword v{VMU}, v{t}, s[8:11], s4 offen sc1
    mu2_done:
    """)

def gateup(e, X):
    vq = VQ(); issue = issuer(vq)
    KS, NS, XD, STG = 32, X.get('NS4', 4), X.get('XD4', 4), 28672
    acc = lambda nt, mt: (nt * 4 + mt) * 4
    wreg = lambda par, nt: (par * 14 + nt) * 4
    xreg = lambda s, mt: 112 + (s * 4 + mt) * 4
    VD, VR, t = 224, 231, 234
    SX, SW, SM = 24, 25, 26
    e(f"""
    s_and_b32 s4, s21, 1
    s_mul_i32 s4, s4, 448
    """)
    for i in range(7):
        e(f"""
        v_add_u32 v{t}, s4, v{VL}
        v_add_u32 v{t}, {64*i}, v{t}
        v_mul_u32_u24 v{t+1}, 4682, v{t}
        v_lshrrev_b32 v{t+1}, 16, v{t+1}
        v_mul_u32_u24 v{t+2}, 14, v{t+1}
        v_sub_u32 v{t+2}, v{t}, v{t+2}
        v_mul_u32_u24 v{t+1}, 7168, v{t+1}
        v_lshl_add_u32 v{VD+i}, v{t+2}, 4, v{t+1}
        """)
        if i & 3: e(f"v_subrev_u32 v{VD+i}, {1024*(i&3)}, v{VD+i}")
    e(f"""
    v_lshrrev_b32 v{t}, 2, v{VL}
    v_mul_u32_u24 v{t}, 224, v{t}
    v_and_b32 v{t+1}, 3, v{VL}
    v_lshl_add_u32 v{VR}, v{t+1}, 3, v{t}
    v_add_u32 v{VR+1}, {2*STG}, v{VR}
    v_add_u32 v{VR+2}, {4*STG}, v{VR}
    s_cmp_lt_u32 s21, 2
    s_cselect_b32 s12, s56, s58
    s_cselect_b32 s13, s57, s59
    s_mov_b32 s14, {1024*7168}
    """)
    publish(e, f"s_lshl_b32 s3, s22, 4\ns_add_u32 s3, s3, s23\ns_lshl_b32 s3, s3, 7\ns_add_u32 s3, s3, {F3}")
    stamp(e, 9)
    e(f"""
    s_and_b32 s22, s2, 1
    s_lshl_b32 s22, s22, 2
    s_bfe_u32 s23, s2, 0x20003
    s_add_u32 s22, s22, s23
    s_bfe_u32 s23, s2, 0x20001
    s_lshl_b32 s23, s23, 3
    s_lshr_b32 s4, s2, 5
    s_add_u32 s23, s23, s4
    s_lshl_b32 s35, s22, 2
    s_add_u32 s35, s35, s21
    s_lshl_b32 s{SX}, s35, 17
    s_add_u32 s{SX}, s{SX}, {HC}
    s_mul_i32 s{SM}, s21, 7168
    s_mul_i32 s{SW}, s23, 224
    s_lshl_b32 s28, s22, 12
    s_add_u32 s28, s28, {F3}
    """)
    def dma_half(st, half):
        out = [(f"s_add_u32 m0, s{SM}, {(st % NS)*STG + half*4096}", None)]
        for i in (range(4) if half == 0 else range(4, 7)):
            out.append((f"buffer_load_dwordx4 v{VD+i}, s[12:15], s{SW} offen offset:{1024*(i&3)} lds", ("w", st)))
        if half: out.append((f"s_add_u32 s{SW}, s{SW}, {64*7168}", None))
        return out
    def xitems(j):
        return [(f"buffer_load_dwordx4 {ar(xreg(j % XD, mt),4)}, v{VG}, s[8:11], s{SX} offen offset:{mt*1024} sc1", ("x", j)) for mt in range(4)] + \
               [(f"s_add_u32 s{SX}, s{SX}, 4096", None)]
    npre = X.get('pre4', 2)
    pre = []
    for st in range(NS): pre.append(dma_half(st, 0) + (dma_half(st, 1) if st < NS - 1 else []))
    for st in range(npre): e.ext(fix_m0(issue(pre[st])))
    for r in range(224): e(f"v_mov_b32 v{r}, 0")
    await_flags(e, "hwait", 28, 32, t)
    vq.drain()
    stamp(e, 10)
    for j in range(XD - 1): e.ext(issue(xitems(j)))
    e("s_barrier")
    def reads(j):
        slot, kk = (j // 2) % NS, j & 1
        out = []
        for nt in range(14):
            off = (slot & 1) * STG + (nt // 7) * 14336 + kk * 7168 + (nt % 7) * 32
            v = VR + (slot >> 1); d = wreg(j & 1, nt)
            out += [f"ds_read_b64_tr_b16 {ar(d,2)}, v{v} offset:{off}", f"ds_read_b64_tr_b16 {ar(d+2,2)}, v{v} offset:{off + 3584}"]
        return out
    e.ext(reads(0))
    for st in range(npre, NS): e.ext(fix_m0(issue(pre[st])))
    blocks = []
    for j in range(KS):
        tags = {("x", j)}
        bar = (j & 1) and j + 1 < KS
        if bar: tags.add(("w", (j + 1) // 2))
        b = [("W", vq.need(tags), 0)] + (["s_barrier"] if bar else [])
        mf = [f"v_mfma_f32_16x16x32_bf16 {vr(acc(nt,mt),4)}, {ar(wreg(j&1,nt),4)}, {ar(xreg(j%XD,mt),4)}, {vr(acc(nt,mt),4)}" for nt, mt in snake(14, 4)]
        rd = reads(j + 1) if j + 1 < KS else []
        vm = []
        st = (j - 1) // 2 + NS if j & 1 else (j - 2) // 2 + NS
        if st < KS // 2: vm += dma_half(st, 0 if j & 1 else 1)
        if j + XD - 1 < KS: vm += xitems(j + XD - 1)
        b += fix_m0(spread(mf, merge(rd, issue(vm)), 0.85))
        blocks.append(b)
    roll(e, "gateup_loop", blocks, 2 * NS * XD // math.gcd(2 * NS, XD), 20)
    stamp(e, 11)
    e(f"""
    v_lshrrev_b32 v{t}, 5, v{VL}
    v_lshlrev_b32 v{t}, 10, v{t}
    v_and_b32 v{t+1}, 31, v{VL}
    v_lshl_add_u32 v{t}, v{t+1}, 4, v{t}
    v_add_u32 v{t+1}, 229376, v{t}
    s_mul_i32 s27, s35, {2*229376}
    s_add_u32 s27, s27, {ACT}
    s_mul_i32 s28, s23, 7
    """)
    for ft in range(7):
        e(f"""s_add_u32 s4, s28, {ft}
        s_lshr_b32 s5, s4, 1
        s_lshl_b32 s5, s5, 11
        s_and_b32 s4, s4, 1
        s_lshl_b32 s4, s4, 9
        s_add_u32 s5, s5, s4
        s_add_u32 s5, s5, s27""")
        for a in range(2):
            d = acc(ft, 2 * a)
            for h in range(2):
                ga, ua = acc(ft, 2*a + h), acc(ft + 7, 2*a + h)
                e(f"""v_pk_mul_f32 {vr(ga,2)}, {vr(ga,2)}, {vr(ua,2)}
                v_pk_mul_f32 {vr(ga+2,2)}, {vr(ga+2,2)}, {vr(ua+2,2)}""")
            for h in range(2):
                ga = acc(ft, 2*a + h)
                e(f"v_cvt_pk_bf16_f32 v{d+2*h}, v{ga}, v{ga+1}\nv_cvt_pk_bf16_f32 v{d+2*h+1}, v{ga+2}, v{ga+3}")
        e("s_nop 0")
        for a in range(2):
            d = acc(ft, 2 * a)
            e(f"""v_permlane32_swap_b32 v{d}, v{d+2}
            v_permlane32_swap_b32 v{d+1}, v{d+3}
            buffer_store_dwordx4 {vr(d,4)}, v{t+a}, s[8:11], s5 offen sc1""")

def down(e, X):
    vq = VQ(); issue = issuer(vq)
    KA, KS, NS, XD, STG = 48, 64, 8, X.get('XD5', 8), 16384
    acc = lambda nt, mt: (nt * 2 + mt) * 4
    wreg = lambda par, nt: (par * 8 + nt) * 4
    xreg = lambda s, mt: 64 + (s * 2 + mt) * 4
    VR, VMU, VF, t = 224, 228, 230, 232
    PR, HR, SQ = 64, 96, 112
    SX, SWO, SWP, SM, SDX, SDW = 24, 25, 26, 27, 30, 31
    tr_addr(e, VR, t)
    e(f"""
    s_mov_b32 s12, s60
    s_mov_b32 s13, s61
    s_mov_b32 s14, {3584*2048}
    s_mov_b32 s16, s62
    s_mov_b32 s17, s63
    """)
    publish(e, f"s_lshl_b32 s3, s22, 5\ns_add_u32 s3, s3, s23\ns_lshl_b32 s3, s3, 7\ns_add_u32 s3, s3, {F4}")
    stamp(e, 12)
    e(f"""
    s_and_b32 s22, s2, 3
    s_lshl_b32 s22, s22, 2
    s_bfe_u32 s4, s2, 0x20003
    s_add_u32 s22, s22, s4
    s_bfe_u32 s33, s2, 0x10002
    s_lshr_b32 s23, s2, 5
    s_lshl_b32 s23, s23, 1
    s_add_u32 s23, s23, s33
    s_lshl_b32 s35, s22, 2
    s_add_u32 s35, s35, s21
    s_mul_i32 s{SX}, s35, 229376
    s_mul_i32 s4, s33, {KA*2048}
    s_add_u32 s{SX}, s{SX}, s4
    s_add_u32 s{SX}, s{SX}, {ACT}
    s_sub_u32 s{SDX}, {KA*2048}, s4
    s_mul_i32 s4, s33, {KA*32*2048}
    s_sub_u32 s{SDW}, {KA*32*2048}, s4
    s_lshl_b32 s{SWO}, s23, 7
    s_xor_b32 s{SWP}, s{SWO}, 128
    s_add_u32 s{SWO}, s{SWO}, s4
    s_add_u32 s{SWP}, s{SWP}, s4
    s_lshl_b32 s{SM}, s21, 11
    s_lshr_b32 s28, s22, 1
    s_lshl_b32 s28, s28, 12
    s_add_u32 s28, s28, {F4}
    """)
    def dma_half(st, half):
        out = []
        if half == 0 or st < KA // 2:
            out.append((f"s_add_u32 m0, s{SM}, {(st % 4)*STG + half*8192}", None))
            for i in range(2):
                out.append((f"buffer_load_dwordx4 v{VD3+i}, s[12:15], s{SWP if half else SWO} offen offset:{1024*i} lds", ("w", st)))
            out.append((f"s_add_u32 s{SWP if half else SWO}, s{SWP if half else SWO}, {64*2048}", None))
        if half == 0 and st == KA // 2 - 1:
            out.append((f"s_add_u32 s{SWO}, s{SWO}, s{SDW}", None))
        if half == 1 and st % 4 == 3:
            out.append((f"s_xor_b32 s{SM}, s{SM}, 0x10000", None))
        return out
    def xitems(j):
        out = [(f"buffer_load_dwordx4 {ar(xreg(j % XD, mt),4)}, v{VG}, s[8:11], s{SX} offen offset:{mt*1024} sc1", ("x", j)) for mt in range(2)] + \
              [(f"s_add_u32 s{SX}, s{SX}, 2048", None)]
        if j == KA - 1: out.append((f"s_add_u32 s{SX}, s{SX}, s{SDX}", None))
        return out
    pre = []
    for st in range(NS): pre += dma_half(st, 0) + (dma_half(st, 1) if st < NS - 1 else [])
    e.ext(fix_m0(issue(pre)))
    for r in range(64): e(f"v_mov_b32 v{r}, 0")
    e(f"""
    s_lshr_b32 s4, s35, 1
    s_lshl_b32 s4, s4, 17
    s_and_b32 s5, s35, 1
    s_lshl_b32 s5, s5, 11
    s_add_u32 s4, s4, s5
    s_lshl_b32 s5, s23, 13
    s_add_u32 s4, s4, s5
    s_add_u32 s40, s4, {HC}
    s_add_u32 s41, s40, 4096
    s_lshl_b32 s42, s35, 7
    s_add_u32 s42, s42, {MU2}
    s_lshl_b32 s43, s35, 11
    s_add_u32 s43, s43, {SSQ}
    s_lshl_b32 s4, s2, 2
    s_add_u32 s4, s4, s21
    s_lshl_b32 s44, s4, 13
    s_add_u32 s44, s44, {XCH}
    s_lshl_b32 s46, s4, 7
    s_add_u32 s46, s46, {F5}
    s_xor_b32 s4, s4, 16
    s_lshl_b32 s45, s4, 13
    s_add_u32 s45, s45, {XCH}
    s_lshl_b32 s47, s4, 7
    s_add_u32 s47, s47, {F5}
    v_and_b32 v{t}, 15, v{VL}
    v_lshlrev_b32 v{t+6}, 2, v{t}
    v_lshrrev_b32 v{t+1}, 4, v{VL}
    v_lshl_add_u32 v{t+7}, v{t+1}, 9, v{t+6}
    v_mov_b32 v{t+5}, 0
    """)
    await_flags(e, "await", 28, 32, t)
    vq.drain()
    stamp(e, 13)
    for j in range(XD - 1): e.ext(issue(xitems(j)))
    e("s_barrier")
    def reads(j):
        out = []
        if j % 8 == 0 and j:
            out += [f"v_xor_b32 v{VR+nt}, 0x10000, v{VR+nt}" for nt in range(4)]
        for nt in range(8 if j < KA else 4):
            off = ((j // 2) % 4) * STG + (nt >> 2) * 8192 + (j & 1) * 4096
            d = wreg(j & 1, nt)
            out += [f"ds_read_b64_tr_b16 {ar(d,2)}, v{VR+(nt&3)} offset:{off}", f"ds_read_b64_tr_b16 {ar(d+2,2)}, v{VR+(nt&3)} offset:{off + 1024}"]
        return out
    e.ext(reads(0))
    extra_vm = {}; extra_need = {}; extra_head = {}
    xs = [(f"buffer_store_dwordx4 {vr(32+4*i,4)}, v{VG2 if i & 4 else VG}, s[8:11], s44 offen offset:{1024*(i&3)} sc1", ("xs", 0)) for i in range(8)]
    extra_vm[KA] = xs[:4]; extra_vm[KA + 1] = xs[4:]
    JF, JP, JC = X.get('jf', 53), X.get('jp', 58), X.get('jc', 60)
    extra_need[JF] = {("xs", 0)}
    extra_vm[JF] = [(f"buffer_store_dword v{VNC}, v{VW0}, s[8:11], s46 offen sc1", ("xf", 0))]
    fl = f"buffer_load_dword v{VF}, v{t+5}, s[8:11], s47 offen sc1"
    extra_vm.setdefault(57, []).extend(
        [(f"buffer_load_dword v{SQ+4*mt+i}, v{t+7}, s[8:11], s43 offen offset:{i*128 + mt*64} sc1", ("r", 0)) for mt in range(2) for i in range(4)])
    extra_vm.setdefault(JP, []).append((fl, ("pl", 0)))
    extra_vm.setdefault(59, []).extend(
        [(f"buffer_load_dword v{VMU+mt}, v{t+6}, s[8:11], s42 offen offset:{mt*64} sc1", ("r", 0)) for mt in range(2)] +
        [(f"buffer_load_dwordx4 {vr(HR + (mt*2+p)*4,4)}, v{VG}, s[8:11], s{40+p} offen offset:{mt*1024} sc1", ("r", 0)) for mt in range(2) for p in range(2)])
    extra_need[JC] = {("pl", 0)}
    chk = E(); test = f"v_cmp_ne_u32 vcc, s{SNC}, v{VF}\ns_cbranch_vccz xwait_ok"
    chk(test); poll(chk, "xwait", fl, test, 4)
    extra_head[JC] = [l.strip() for l in chk.l]
    xl = [(f"buffer_load_dwordx4 {vr(PR+4*i,4)}, v{VG2 if i & 4 else VG}, s[8:11], s45 offen offset:{1024*(i&3)} sc1", ("r", 0)) for i in range(8)]
    extra_vm.setdefault(JC, []).extend(xl)
    blocks = []
    for j in range(KS):
        tags = {("x", j)} | set(extra_need.get(j, ()))
        bar = (j & 1) and j + 1 < KS
        if bar: tags.add(("w", (j + 1) // 2))
        b = [("W", vq.need(tags), 0)] + (["s_barrier"] if bar else []) + extra_head.get(j, [])
        mf = [f"v_mfma_f32_16x16x32_bf16 {vr(acc(nt,mt),4)}, {ar(wreg(j&1,nt),4)}, {ar(xreg(j%XD,mt),4)}, {vr(acc(nt,mt),4)}" for nt, mt in snake(8 if j < KA else 4, 2)]
        rd = reads(j + 1) if j + 1 < KS else []
        vm = []
        st = (j - 1) // 2 + NS if j & 1 else (j - 2) // 2 + NS
        if st < KS // 2: vm += dma_half(st, 0 if j & 1 else 1)
        if j + XD - 1 < KS: vm += xitems(j + XD - 1)
        vm += extra_vm.get(j, [])
        vml = issue(vm)
        fill = merge(rd, vml) if j != KA else rd + vml
        b += fix_m0(spread(mf, fill, X.get('frac5', 0.8)))
        blocks.append(b)
    roll(e, "down_loop", blocks, 8 * XD // math.gcd(8, XD), 20)
    stamp(e, 14)
    LO = 131072
    e(f"""
    s_lshl_b32 s27, s21, 12
    s_add_u32 s27, s27, {LO}
    v_and_b32 v{t}, 15, v{VL}
    v_and_b32 v{t+1}, 7, v{VL}
    v_lshrrev_b32 v{t+2}, 5, v{VL}
    v_xor_b32 v{t+1}, v{t+1}, v{t+2}
    v_lshlrev_b32 v{t}, 7, v{t}
    v_bfe_u32 v{t+2}, v{VL}, 4, 1
    v_lshl_add_u32 v{t}, v{t+2}, 3, v{t}
    v_add_u32 v{t}, s27, v{t}
    """)
    for nt in range(4):
        e(f"v_xor_b32 v{t+2}, {2*nt}, v{t+1}\nv_lshl_add_u32 v{VR+nt}, v{t+2}, 4, v{t}")
    e("s_waitcnt vmcnt(8)")
    for mt in range(2):
        q = SQ + 4 * mt
        e(f"v_add_f32 v{q}, v{q}, v{q+1}\nv_add_f32 v{q+2}, v{q+2}, v{q+3}\nv_add_f32 v{q}, v{q}, v{q+2}")
        gen.red_groups(e, q, t)
        e(f"v_mov_b32 v{q+1}, {hex(f2u(1e-5))}\nv_fmac_f32 v{q+1}, {hex(f2u(1/1024))}, v{q}\nv_rcp_f32 v{q}, v{q+1}")
    for nt in range(4):
        e(f"s_waitcnt vmcnt({6 - 2*nt})")
        for mt in range(2):
            a = acc(nt, mt); hr = HR + (mt*2 + (nt >> 1)) * 4 + (nt & 1) * 2
            mu, mo = bc(VMU + mt); r2, ro = bc(SQ + 4 * mt)
            e(f"""v_lshlrev_b32 v{t}, 16, v{hr}
            v_and_b32 v{t+1}, 0xffff0000, v{hr}
            v_lshlrev_b32 v{t+2}, 16, v{hr+1}
            v_and_b32 v{t+3}, 0xffff0000, v{hr+1}""")
            for p in range(2):
                e(f"v_pk_add_f32 {vr(a+2*p,2)}, {vr(a+2*p,2)}, {vr(PR+a+2*p,2)}")
            for p in range(2):
                e(f"v_pk_add_f32 {vr(t+2*p,2)}, {vr(t+2*p,2)}, {mu} op_sel:[0,{mo}] op_sel_hi:[1,{mo}]")
            for p in range(2):
                e(f"v_pk_fma_f32 {vr(a+2*p,2)}, {vr(a+2*p,2)}, {r2}, {vr(t+2*p,2)} op_sel:[0,{ro},0] op_sel_hi:[1,{ro},1]")
            e(f"""v_cvt_pk_bf16_f32 v{a}, v{a}, v{a+1}
            v_cvt_pk_bf16_f32 v{a+1}, v{a+2}, v{a+3}
            ds_write_b64 v{VR+nt}, {vr(a,2)} offset:{mt*2048}""")
    e(f"""
    v_lshrrev_b32 v{t}, 3, v{VL}
    v_and_b32 v{t+1}, 7, v{VL}
    v_xor_b32 v{t+2}, v{t+1}, v{t}
    v_lshlrev_b32 v{t+2}, 4, v{t+2}
    v_lshl_add_u32 v{t+2}, v{t}, 7, v{t+2}
    v_add_u32 v{t+2}, s27, v{t+2}
    v_lshlrev_b32 v{t+1}, 4, v{t+1}
    v_lshl_add_u32 v{t+1}, v{t}, 11, v{t+1}
    s_lshl_b32 s28, s35, 16
    s_lshl_b32 s4, s23, 7
    s_add_u32 s28, s28, s4
    s_waitcnt lgkmcnt(0)
    """)
    for i in range(4):
        e(f"ds_read_b128 {vr(HR+4*i,4)}, v{t+2} offset:{i*1024}")
    for i in range(4):
        e(f"s_waitcnt lgkmcnt({3-i})\nbuffer_store_dwordx4 {vr(HR+4*i,4)}, v{t+1}, s[16:19], s28 offen")
        if i < 3: e(f"s_add_u32 s28, s28, {8*2048}")

def k_mega(name, X={}):
    e = E()
    e(f".text\n.globl {name}\n.p2align 8\n.type {name},@function\n{name}:")
    e(f"s_cmp_ge_u32 s2, 256\ns_cbranch_scc1 all_done")
    stamp(e, 0)
    slow = front(e, True, X)
    oproj(e, X)
    gateup(e, X)
    down(e, X)
    stamp_out(e, 0, 16)
    e("all_done:\ns_endpgm\ncode_end:")
    slow(e)
    return name, e.text(), descriptor(name, 256, 192, 102), (256, 256, 151552)

def build_single(X={}):
    name, text, desc, (grid, block, lds) = k_mega(NAME + "_kernel", X)
    return (f"; @launch grid=({grid},1,1) block=({block},1,1) lds={lds}\n"
            "; generated by a script from hand-written instruction templates\n"
            '.amdgcn_target "amdgcn-amd-amdhsa--gfx950"\n' + text + desc)

def default_kernels(X={}):
    return [k_mega("mega_kernel", X)]

if __name__ == "__main__":
    path = sys.argv[1] if len(sys.argv) > 1 else f"cdna_kernels/{NAME}.s"
    open(path, "w").write(build_single())
    print("wrote", path)
```
